```python
import torch

def _softmax(x, axis=-1):
    return torch.softmax(x, dim=axis)
def _gelu(x):
    return torch.nn.functional.gelu(x, approximate="tanh")
def _silu(x):
    return torch.nn.functional.silu(x)
def _sigmoid(x):
    return torch.sigmoid(x)
def _layernorm(x, axis=-1, eps=1e-5):
    m = x.mean(dim=axis, keepdim=True)
    v = x.var(dim=axis, keepdim=True, unbiased=False)
    return (x - m) / torch.sqrt(v + eps)
def _scatter_add(tgt, idx, src, axis=0):
    return tgt.clone().index_add_(axis, idx, src)
def _segment_sum(src, seg, n):
    out = torch.zeros((n,) + src.shape[1:], dtype=src.dtype)
    return out.index_add_(0, seg, src)
def _pad(x, pw):
    flat = tuple(v for pair in reversed(pw) for v in pair)
    return torch.nn.functional.pad(x, flat)

kernel_name = 'standalone__gqa_block_cached__decode'

def setup_inputs():

    _w = (lambda a: (lambda t: t.to(torch.bfloat16) if t.is_floating_point() else t)(torch.as_tensor(a)))
    B, Sq, D = 8, 1, 640
    Hq, Hkv, Sk, Dh = 32, 32, 4096, 192
    assert Hq % Hkv == 0, (Hq, Hkv)
    return {
        "x": _w((lambda *s: torch.randn(*s, dtype=torch.bfloat16) * 0.8)(B, Sq, D)),
        "k_cache": _w((lambda *s: torch.randn(*s, dtype=torch.bfloat16) * 0.8)(B, Hkv, Sk, Dh)),
        "v_cache": _w((lambda *s: torch.randn(*s, dtype=torch.bfloat16) * 0.05)(B, Hkv, Sk, Dh)),
        "wq": _w((lambda *s: torch.randn(*s, dtype=torch.bfloat16) * 0.8)(D, Hq * Dh) * (D ** -0.5)),
        "wo": _w((lambda *s: torch.randn(*s, dtype=torch.bfloat16) * 0.05)(Hq * Dh, D) * ((Hq * Dh) ** -0.5)),
    }

def reference(x, k_cache, v_cache, wq, wo):
    B, Sq, D = x.shape
    Hq, Dh = 32, 192
    Hkv = k_cache.shape[1]
    rep = Hq // Hkv
    q = (lambda x, *d: x.permute(*d))((x @ wq).reshape(B, Sq, Hq, Dh), 0, 2, 1, 3)
    k = (lambda x, n, axis: torch.repeat_interleave(x, n, dim=axis))(k_cache, rep, axis=1)
    v = (lambda x, n, axis: torch.repeat_interleave(x, n, dim=axis))(v_cache, rep, axis=1)
    scores = torch.einsum("bhqd,bhkd->bhqk", q, k) * (Dh ** -0.5)
    p = _softmax(scores, axis=-1)
    o = torch.einsum("bhqk,bhkd->bhqd", p, v)
    return (lambda x, *d: x.permute(*d))(o, 0, 2, 1, 3).reshape(B, Sq, Hq * Dh) @ wo
```

```python
import re
TRANS = ("v_exp_f32","v_log_f32","v_rcp_f32","v_rsq_f32","v_sqrt_f32")
def regs(tok):
    tok = tok.strip()
    neg = tok.lstrip("-|").rstrip("|")
    m = re.fullmatch(r"([vas])\[(\d+):(\d+)\]", neg)
    if m: return [f"{m.group(1)}{i}" for i in range(int(m.group(2)), int(m.group(3))+1)]
    m = re.fullmatch(r"([vas])(\d+)", neg)
    if m: return [neg]
    if neg == "vcc": return ["vcc"]
    if neg == "exec": return ["exec"]
    if neg == "m0": return ["m0"]
    return []
class I:
    pass
def parse(line):
    s = line.split(";")[0].strip()
    if not s or s.endswith(":") or s.startswith("."): return None
    p = s.split(None, 1); op = p[0]; rest = p[1] if len(p) > 1 else ""
    x = I(); x.op = op; x.line = line
    ops = [t.strip() for t in rest.split(",")]
    mods = ""
    if ops:
        lp = ops[-1].split(None, 1)
    m = re.search(r"(quad_perm:\[[^\]]*\]|row_\w+(:\d+)?|op_sel\w*:\[[^\]]*\])", rest)
    x.dpp = bool(re.search(r"quad_perm|row_(ror|shr|shl|half_mirror|mirror|bcast|newbcast)", rest))
    rest2 = re.sub(r"(quad_perm|op_sel|op_sel_hi|neg_lo|neg_hi):\[[^\]]*\]", "", rest)
    ops = [t.strip().split()[0] if t.strip() else "" for t in rest2.split(",")]
    x.w = []; x.r = []
    x.cls = None
    x.n = 1
    if op == "s_nop": x.cls = "nop"; x.n = int(rest.strip()) + 1; return x
    if op.startswith("v_mfma"):
        x.cls = "mfma"; x.w = regs(ops[0]); x.ra = regs(ops[1]) + regs(ops[2]); x.rc = regs(ops[3]); x.r = x.ra + x.rc
        x.passes = 4 if "16x16x32" in op else 8
        return x
    if op.startswith("v_"):
        x.cls = "valu"
        x.trans = op.split("_e")[0] in TRANS or op in TRANS
        x.dot = op.startswith("v_dot")
        x.w = regs(ops[0]); x.r = sum((regs(t) for t in ops[1:]), [])
        if op.startswith("v_cndmask") and len(ops) == 3: x.r.append("vcc")
        if op.startswith(("v_fmac", "v_dot2c", "v_writelane")): x.r += x.w
        if x.dpp: x.r += x.w
        x.srcs = ops[1:]
        return x
    if op.startswith("buffer_") or op.startswith("global_"):
        x.cls = "vmem"
        allr = sum((regs(t) for t in ops), [])
        if "load" in op: x.w = regs(ops[0]); x.r = sum((regs(t) for t in ops[1:]), [])
        else:
            x.r = allr
            if "atomic" in op and "sc0" in rest: x.w = regs(ops[0])
        x.store_big = ("store" in op and ("x4" in op or "x3" in op))
        x.data = regs(ops[0])
        return x
    if op.startswith("ds_"):
        x.cls = "ds"
        if op.startswith(("ds_read", "ds_bpermute", "ds_swizzle")) or "rtn" in op: x.w = regs(ops[0]); x.r = sum((regs(t) for t in ops[1:]), [])
        else: x.r = sum((regs(t) for t in ops), [])
        return x
    x.cls = "salu"
    if op.startswith(("s_cmp", "s_cbranch", "s_branch", "s_waitcnt", "s_barrier", "s_endpgm", "s_bitcmp", "s_sleep", "s_setprio")):
        x.r = sum((regs(t) for t in ops), [])
    else:
        x.w = regs(ops[0]); x.r = sum((regs(t) for t in ops[1:]), [])
    return x
def need(p, c):
    n = 0
    W = set(p.w)
    if p.cls == "valu":
        sw = {r for r in W if r[0] == "s" or r == "vcc"}
        vw = {r for r in W if r[0] in "va" and r != "vcc"}
        if c.cls == "valu":
            if c.dpp and vw & set(c.r): n = max(n, 2)
            if sw & set(c.r):
                n = max(n, 2)
                if c.op.startswith(("v_readlane", "v_writelane")) and set(regs(c.srcs[-1])) & sw: n = max(n, 4)
            if c.op.startswith(("v_readlane", "v_readfirstlane")) and vw & set(c.r): n = max(n, 1)
            if c.op.startswith("v_permlane") and vw & (set(c.r) | set(c.w)): n = max(n, 2)
            if p.trans and vw & set(c.r): n = max(n, 1)
            if p.dot and vw & (set(c.r) | set(c.w)):
                if c.op == p.op and not (vw & set(regs(c.srcs[0]) + regs(c.srcs[1]))): pass
                else: n = max(n, 3)
        if c.cls == "mfma" and vw & set(c.r): n = max(n, 3 if p.dot else 2)
        if c.cls == "vmem" and sw & set(c.r): n = max(n, 5)
        if c.cls in ("vmem", "ds") and p.dot and vw & set(c.r): n = max(n, 3)
        if c.cls in ("vmem", "ds") and p.trans and vw & set(c.r): n = max(n, 1)
    if p.cls == "mfma":
        big = {4: 8, 8: 12}[p.passes]
        if c.cls == "mfma":
            if W & set(c.ra): n = max(n, big)
            if W & set(c.rc) and set(c.rc) != W: n = max(n, big - 2)
            if W & set(c.w) and set(c.rc) != W: n = max(n, big)
        elif c.cls in ("valu", "vmem", "ds"):
            if W & (set(c.r) | set(c.w)): n = max(n, big)
            if c.cls == "valu" and set(p.rc) & set(c.w): n = max(n, {4: 3, 8: 7}[p.passes])
    if p.cls == "vmem" and p.store_big and c.cls in ("valu", "vmem", "ds", "mfma") and set(p.data) & set(c.w): n = max(n, 2)
    if p.cls == "salu" and "m0" in W and c.cls == "vmem" and "lds" in c.line: n = max(n, 1)
    return n
def pad(lines, hist=None):
    out = []; hist = list(hist or [])
    for ln in lines:
        x = parse(ln)
        if x is None: out.append(ln); continue
        d = 0; req = 0
        for p in reversed(hist[-24:]):
            r = need(p, x) - d
            req = max(req, r)
            d += p.n
            if d > 20: break
        while req > 0:
            k = min(req, 8); nl = f"  s_nop {k-1}"; out.append(nl); hist.append(parse(nl)); req -= k
        out.append(ln); hist.append(x)
    return out
def check_loop(body):
    h = [parse(l) for l in body]; h = [x for x in h if x]
    again = pad(body, h)
    assert again == body, "loop back-edge hazard"
```

```python
import sys, os
from hz import pad, check_loop
NAME = "standalone__gqa_block_cached__decode_kernel"
HDR = open("standalone__gqa_block_cached__decode.s.ref").read().split("; Override launch")[0]
import struct
def f2u(f): return struct.unpack("<I", struct.pack("<f", f))[0]
LOG2E = 1.4426950408889634
SCALE = 192 ** -0.5

def mulshift(div, maxv):
    for sh in range(4, 24):
        m = (1 << sh) // div + 1
        if m * maxv < (1 << 24) * 256 and m < (1 << 24) and all(((v * m) >> sh) == v // div for v in range(maxv + 1)):
            if m * maxv < (1 << 32): return m, sh
    raise Exception("no mulshift")

QP = 0
QB = 6144
OP = 7680
ML = 13824
OB = 13952
FP = 14464
FL = 24704
RP = 24720 + 16
LDS = RP + 20480

def gen(fn, D=5, DA=8, DT=8, C=1, R1=63, R2=3, stamps=False, kvflags="nt", wo_per_step=3, mimic=True, NBIG=10):
    L = []; A = L.append
    rare = []
    VA0, VA2, VL0, VL2, VT = 10, 11, 12, 13, 14
    MK = 16; Q = 20; ACC = 32; SEL = 44
    VS, VTMP, VM, VNML, VLS, VP, VWQ, VWO = 48, 49, 50, 51, 52, 53, 54, 55
    RK, RV, BK = 64, 88, 112
    SK, SV, SWQ, SWO, SX, SWS, SOUT, SDBG = 8, 12, 16, 20, 24, 28, 32, 36
    sW, sB, sH, sBH, sOFF, sT, sIDX, sL0, sL1, sLOG, sSC, sPLO, sPHI, sTMP, sTMP2, sWOFF, sHI16 = 56, 57, 58, 59, 60, 61, 62, 63, 64, 65, 66, 67, 68, 69, 70, 71, 72
    def srd(n): return f"s[{n}:{n+3}]"
    def v4(n, p="v"): return f"{p}[{n}:{n+3}]"

    A(f"  s_cmp_ge_u32 s2, 256"); A("  s_cbranch_scc1 L_end")
    A("  s_load_dwordx16 s[40:55], s[0:1], 0")
    if stamps: A("  s_memrealtime s[80:81]")
    A("  v_lshrrev_b32 v1, 6, v0"); A(f"  v_readfirstlane_b32 s{sW}, v1")
    A("  v_and_b32 v0, 63, v0")
    A(f"  s_and_b32 s{sH}, s2, 7"); A(f"  s_lshl_b32 s{sH}, s{sH}, 2"); A(f"  s_bfe_u32 s{sTMP}, s2, {3 | (2 << 16)}"); A(f"  s_add_u32 s{sH}, s{sH}, s{sTMP}")
    A(f"  s_lshr_b32 s{sB}, s2, 5"); A(f"  s_lshl_b32 s{sBH}, s{sB}, 5"); A(f"  s_add_u32 s{sBH}, s{sBH}, s{sH}")
    A("  v_and_b32 v1, 7, v0"); A("  v_lshlrev_b32 v1, 4, v1"); A("  v_lshrrev_b32 v2, 3, v0"); A("  v_and_b32 v3, 1, v2"); A("  v_lshrrev_b32 v4, 4, v0")
    A("  v_mul_u32_u24 v5, 40, v2")
    A(f"  v_mul_u32_u24 v{VWQ}, {20*12288}, v2"); A(f"  v_add_u32 v{VWQ}, v{VWQ}, v1")
    A("  v_add_u32 v6, 1, v2"); A("  v_mul_u32_u24 v6, 11, v6"); A("  v_lshrrev_b32 v6, 5, v6"); A("  v_mul_u32_u24 v6, 84, v6")
    A("  v_mul_u32_u24 v7, 85, v2"); A("  v_add_u32 v7, 84, v7"); A("  v_sub_u32 v7, v7, v6"); A("  v_mul_u32_u24 v7, 384, v7"); A("  v_add_u32 v7, v7, v1")
    A("  v_lshlrev_b32 v8, 7, v3")
    A("  v_lshlrev_b32 v9, 8, v3"); A("  v_sub_u32 v9, 256, v9")
    A(f"  v_add_u32 v{VL0}, v7, v8"); A(f"  v_add_u32 v{VL2}, v7, v9")
    A(f"  s_mul_i32 s{sL0}, s{sW}, {2*196608}"); A(f"  s_add_u32 s{sL1}, s{sL0}, 196608")
    A("  s_waitcnt lgkmcnt(0)")
    A(f"  s_mul_i32 s{sTMP}, s{sB}, 1280"); A(f"  s_mul_i32 s{sTMP2}, s{sW}, 320"); A(f"  s_add_u32 s{sTMP}, s{sTMP}, s{sTMP2}")
    A(f"  s_add_u32 s{SX}, s40, s{sTMP}"); A(f"  s_addc_u32 s{SX+1}, s41, 0"); A(f"  s_mov_b32 s{SX+2}, 320"); A(f"  s_mov_b32 s{SX+3}, 0x20000")
    A(f"  s_mul_i32 s{sTMP}, s{sH}, 384"); A(f"  s_mul_i32 s{sTMP2}, s{sW}, {160*12288}"); A(f"  s_add_u32 s{sTMP}, s{sTMP}, s{sTMP2}")
    A(f"  s_add_u32 s{SWQ}, s46, s{sTMP}"); A(f"  s_addc_u32 s{SWQ+1}, s47, 0"); A(f"  s_mov_b32 s{SWQ+2}, {159*12288+384}"); A(f"  s_mov_b32 s{SWQ+3}, 0x20000")
    A(f"  s_mul_i32 s{sTMP}, s{sBH}, 1572864")
    A(f"  s_add_u32 s{SK}, s42, s{sTMP}"); A(f"  s_addc_u32 s{SK+1}, s43, 0"); A(f"  s_mov_b32 s{SK+2}, 1572864"); A(f"  s_mov_b32 s{SK+3}, 0x20000")
    A(f"  s_add_u32 s{SV}, s44, s{sTMP}"); A(f"  s_addc_u32 s{SV+1}, s45, 0"); A(f"  s_mov_b32 s{SV+2}, 1572864"); A(f"  s_mov_b32 s{SV+3}, 0x20000")

    def setup2():
        A(f"  s_mul_i32 s{sTMP}, s{sH}, {192*1280}"); A(f"  s_mul_i32 s{sTMP2}, s{sW}, {48*1280}"); A(f"  s_add_u32 s{sTMP}, s{sTMP}, s{sTMP2}")
        A(f"  s_add_u32 s{SWO}, s48, s{sTMP}"); A(f"  s_addc_u32 s{SWO+1}, s49, 0"); A(f"  s_mov_b32 s{SWO+2}, {48*1280}"); A(f"  s_mov_b32 s{SWO+3}, 0x20000")
        A(f"  s_mul_i32 s{sTMP}, s{sB}, {32*2560}"); A(f"  s_add_u32 s{sTMP}, s{sTMP}, 0x100000")
        A(f"  s_add_u32 s{SWS}, s54, s{sTMP}"); A(f"  s_addc_u32 s{SWS+1}, s55, 0"); A(f"  s_mov_b32 s{SWS+2}, {32*2560}"); A(f"  s_mov_b32 s{SWS+3}, 0x20000")
        A(f"  s_mul_i32 s{sTMP}, s{sB}, 1280")
        A(f"  s_add_u32 s{SOUT}, s50, s{sTMP}"); A(f"  s_addc_u32 s{SOUT+1}, s51, 0"); A(f"  s_mov_b32 s{SOUT+2}, 1280"); A(f"  s_mov_b32 s{SOUT+3}, 0x20000")
        A(f"  s_mov_b32 s{SDBG}, s52"); A(f"  s_mov_b32 s{SDBG+1}, s53"); A(f"  s_mov_b32 s{SDBG+2}, 256"); A(f"  s_mov_b32 s{SDBG+3}, 0x20000")
        A(f"  s_mov_b32 s{sLOG}, {hex(f2u(LOG2E))}"); A(f"  s_mov_b32 s{sSC}, {hex(f2u(SCALE))}")
        A(f"  s_mov_b32 s{sPLO}, 0x01000100"); A(f"  s_mov_b32 s{sPHI}, 0x03020302"); A(f"  s_mov_b32 s{sHI16}, 0xffff0000")
        A("  v_mul_u32_u24 v6, 384, v4"); A(f"  v_mul_u32_u24 v7, {85*384}, v3"); A("  v_add_u32 v6, v6, v7"); A("  v_add_u32 v6, v6, v1")
        A(f"  v_add_u32 v{VA0}, v6, v8"); A(f"  v_add_u32 v{VA2}, v6, v9")
        A(f"  v_mul_u32_u24 v{VWO}, {12*1280}, v4"); A(f"  v_add_u32 v{VWO}, v{VWO}, v8"); A(f"  v_add_u32 v{VWO}, v{VWO}, v1")
        A("  v_and_b32 v6, 1, v0"); A("  v_lshlrev_b32 v6, 4, v6"); A("  v_mov_b32 v7, 0xffff"); A("  v_lshlrev_b32 v7, v6, v7")
        A("  v_bfe_u32 v6, v0, 1, 2")
        for k in range(4):
            A(f"  v_cmp_eq_u32 vcc, {k}, v6"); A(f"  v_cndmask_b32 v{MK+k}, 0, v7, vcc")
        A(f"  s_bfe_u32 s{sTMP}, s2, {3 | (3 << 16)}"); A(f"  s_mul_i32 s{sTMP}, s{sTMP}, {R1}")
        A(f"  s_bfe_u32 s{sTMP2}, s2, {6 | (2 << 16)}"); A(f"  s_mul_i32 s{sTMP2}, s{sTMP2}, {R2}"); A(f"  s_add_u32 s{sTMP}, s{sTMP}, s{sTMP2}")
        A(f"  s_mul_i32 s{sTMP2}, s{sW}, {C}"); A(f"  s_add_u32 s{sTMP}, s{sTMP}, s{sTMP2}")
        assert 7*R1 + 3*R2 < 504
        m21, s21 = mulshift(21, 1100); m3, s3 = mulshift(3, 60)
        for half in range(2):
            A("  v_lshlrev_b32 v6, 1, v0")
            if half: A("  v_add_u32 v6, 1, v6")
            if C == 1: A("  v_lshlrev_b32 v6, 2, v6")
            else:
                mc, sc = mulshift(C, 128)
                A(f"  v_mul_u32_u24 v7, {mc}, v6"); A(f"  v_lshrrev_b32 v7, {sc}, v7"); A(f"  v_mul_u32_u24 v7, {3*C}, v7"); A("  v_add_u32 v6, v6, v7")
            A(f"  v_add_u32 v6, s{sTMP}, v6")
            A("  v_subrev_u32 v7, 504, v6"); A("  v_cmp_le_u32 vcc, 504, v6"); A("  v_cndmask_b32 v6, v6, v7, vcc")
            A(f"  v_mul_u32_u24 v7, {m21}, v6"); A(f"  v_lshrrev_b32 v7, {s21}, v7")
            A(f"  v_mul_u32_u24 v56, {m3}, v7"); A(f"  v_lshrrev_b32 v56, {s3}, v56")
            A("  v_mul_u32_u24 v7, 87, v7"); A("  v_sub_u32 v7, v7, v56"); A("  v_lshl_add_u32 v7, v6, 2, v7")
            if half == 0: A(f"  v_and_b32 v{VT}, 0xffff, v7")
            else: A(f"  v_lshl_or_b32 v{VT}, v7, 16, v{VT}")
        for r in range(12): A(f"  v_mov_b32 v{ACC+r}, 0")
        A(f"  v_mov_b32 v{VM}, 0xff800000"); A(f"  v_mov_b32 v{VNML}, 0x7f800000"); A(f"  v_mov_b32 v{VLS}, 0")

    class Ld: pass
    def mk(kind, step, t, dstp, dst, text, pre=()):
        l = Ld(); l.kind, l.step, l.t, l.dstp, l.dst, l.text, l.pre = kind, step, t, dstp, dst, text, list(pre); l.done = False; return l
    def kv_load(n, isv, t, loop=False):
        if n < NBIG:
            p, d = ("a", 12*n + 4*t) if isv else ("v", BK + 12*n + 4*t)
        else:
            p, d = "v", (RV if isv else RK) + 12*(n % 2) + 4*t
        pre = []
        if n < 2:
            so = f"s{sL0 + n}"; va = VL2 if t == 2 else VL0
        else:
            so = f"s{sOFF}"; va = VA2 if t == 2 else VA0
            if not isv and t == 0:
                if n % 2 == 0: pre += [f"  s_and_b32 s{sOFF}, s{sT}, 0xffff", f"  s_mul_i32 s{sOFF}, s{sOFF}, 384"]
                else: pre += [f"  s_lshr_b32 s{sOFF}, s{sT}, 16", f"  s_mul_i32 s{sOFF}, s{sOFF}, 384"]
        if n % 2 == 1 and not isv and t == 1 and n + 1 < 128:
            k = (n + 1 - 2) // 2
            if loop: pre += [f"  v_readlane_b32 s{sT}, v{VT}, s{sIDX}", f"  s_add_u32 s{sIDX}, s{sIDX}, 1"]
            else: pre += [f"  v_readlane_b32 s{sT}, v{VT}, {k}"]
        off = f" offset:128" if t == 1 else ""
        txt = f"  buffer_load_dwordx4 {v4(d,p)}, v{va}, {srd(SV if isv else SK)}, {so} offen{off} {kvflags}"
        return mk("v" if isv else "k", n, t, p, d, txt, pre)
    def kv_step(n, loop=False): return [kv_load(n, isv, t, loop) for isv in (0, 1) for t in range(3)]
    def wq_load(i):
        s, t = divmod(i, 3); d = 120 + 4*(i % 30)
        pre = [f"  s_mov_b32 s{sWOFF}, {s*12288}"] if t == 0 else []
        off = f" offset:{128*t}" if t else ""
        return mk("wq", s, t, "a", d, f"  buffer_load_dwordx4 {v4(d,'a')}, v{VWQ}, {srd(SWQ)}, s{sWOFF} offen{off}", pre)
    def wo_reg(i): return (120 + 4*i) if i < 30 else 4*(i - 30)
    def wo_load(i):
        rb, tp = divmod(i, 5); d = wo_reg(i)
        pre = [f"  s_mov_b32 s{sWOFF}, {(rb//3)*3840}"] if i % 15 == 0 else []
        o = (rb % 3)*1280 + 256*tp
        off = f" offset:{o}" if o else ""
        return mk("wo", rb, tp, "a", d, f"  buffer_load_dwordx4 {v4(d,'a')}, v{VWO}, {srd(SWO)}, s{sWOFF} offen{off}", pre)

    def selector(src):
        for k in range(4): A(f"  v_and_b32 v{SEL+k}, v{src}, v{MK+k}")
    uid = [0]
    def consume(l):
        l.done = True
        if l.kind == "wq":
            if l.t == 0:
                A(f"  v_perm_b32 v{VP}, v{Q + l.step//2}, v{Q + l.step//2}, s{sPHI if l.step % 2 else sPLO}")
                selector(VP)
            A(f"  v_mfma_f32_16x16x32_bf16 {v4(ACC+4*l.t)}, {v4(SEL)}, {v4(l.dst,l.dstp)}, {v4(ACC+4*l.t)}")
        elif l.kind == "k":
            for r in range(4):
                c = "0" if (l.t == 0 and r == 0) else f"v{VS}"
                A(f"  v_dot2_f32_bf16 v{VS}, v{l.dst+r}, v{Q+4*l.t+r}, {c}")
            if l.t == 2:
                A(f"  v_add_f32_dpp v{VS}, v{VS}, v{VS} quad_perm:[1,0,3,2] row_mask:0xf bank_mask:0xf")
                A(f"  v_add_f32_dpp v{VS}, v{VS}, v{VS} quad_perm:[2,3,0,1] row_mask:0xf bank_mask:0xf")
                A(f"  v_add_f32_dpp v{VS}, v{VS}, v{VS} row_half_mirror row_mask:0xf bank_mask:0xf")
                if mimic:
                    A(f"  v_cvt_pk_bf16_f32 v{VS}, v{VS}, v{VS}"); A(f"  v_and_b32 v{VS}, s{sHI16}, v{VS}")
                    A(f"  v_mul_f32 v{VS}, s{sSC}, v{VS}")
                    A(f"  v_cvt_pk_bf16_f32 v{VS}, v{VS}, v{VS}"); A(f"  v_and_b32 v{VS}, s{sHI16}, v{VS}")
                else:
                    A(f"  v_mul_f32 v{VS}, s{sSC}, v{VS}")
                u = uid[0]; uid[0] += 1
                A(f"  v_cmp_gt_f32 vcc, v{VS}, v{VM}"); A(f"  s_cbranch_vccnz L_rs{u}"); A(f"L_rb{u}:")
                A(f"  v_fma_f32 v{VP}, v{VS}, s{sLOG}, v{VNML}"); A(f"  v_exp_f32 v{VP}, v{VP}")
                A(f"  v_cvt_pk_bf16_f32 v{VTMP}, v{VP}, v{VP}"); A(f"  v_add_f32 v{VLS}, v{VLS}, v{VP}")
                selector(VTMP)
                R = [f"L_rs{u}:", "  s_nop 7",
                     f"  v_max_f32_dpp v{VTMP}, v{VS}, v{VS} row_ror:8 row_mask:0xf bank_mask:0xf",
                     f"  v_readlane_b32 s74, v{VTMP}, 0", f"  v_readlane_b32 s75, v{VTMP}, 16", f"  v_readlane_b32 s76, v{VTMP}, 32", f"  v_readlane_b32 s77, v{VTMP}, 48",
                     f"  v_max_f32 v{VM}, s74, v{VM}", f"  v_max_f32 v{VM}, s75, v{VM}", f"  v_max_f32 v{VM}, s76, v{VM}", f"  v_max_f32 v{VM}, s77, v{VM}",
                     f"  v_mul_f32 v{VTMP}, s{sLOG}, v{VM}",
                     f"  v_sub_f32 v{VP}, 0, v{VNML}",
                     f"  v_sub_f32 v{VP}, v{VP}, v{VTMP}", f"  v_exp_f32 v{VP}, v{VP}",
                     f"  v_sub_f32 v{VNML}, 0, v{VTMP}",
                     f"  v_mul_f32 v{VLS}, v{VLS}, v{VP}"]
                R += [f"  v_mul_f32 v{ACC+r}, v{ACC+r}, v{VP}" for r in range(12)]
                R += [f"  s_branch L_rb{u}"]
                rare.extend(pad(R))
        elif l.kind == "v":
            A(f"  v_mfma_f32_16x16x32_bf16 {v4(ACC+4*l.t)}, {v4(SEL)}, {v4(l.dst,l.dstp)}, {v4(ACC+4*l.t)}")

    S = []
    st = dict(comp=-1)
    owner = {}
    def wait(n):
        c = len(S) - 1 - n
        if c > st["comp"]:
            A(f"  s_waitcnt vmcnt({n})"); st["comp"] = c
    def issue(l):
        key = (l.dstp, l.dst)
        if key in owner: assert owner[key].done, (l.kind, l.step, l.t, owner[key].kind, owner[key].step)
        owner[key] = l
        for p in l.pre: A(p)
        A(l.text); S.append(l)
    cptr = [0]
    qready = [False]
    backlog = []
    def drain():
        while cptr[0] <= st["comp"]:
            l = S[cptr[0]]
            if l.kind in ("k", "v"):
                if l.step < NBIG: pass
                elif not qready[0]: break
                else:
                    consume(l)
                    if l.kind == "v" and l.t == 2 and backlog:
                        for x in backlog.pop(0): consume(x)
            elif l.kind == "wq": consume(l)
            elif l.kind == "x": l.done = True
            cptr[0] += 1

    X = [mk("x", 0, 0, "v", Q, f"  buffer_load_dwordx4 {v4(Q)}, v5, {srd(SX)}, 0 offen"),
         mk("x", 0, 1, "v", Q+4, f"  buffer_load_dwordx4 {v4(Q+4)}, v5, {srd(SX)}, 0 offen offset:16"),
         mk("x", 0, 2, "v", Q+8, f"  buffer_load_dwordx2 v[{Q+8}:{Q+9}], v5, {srd(SX)}, 0 offen offset:32")]
    kv = []
    for n in range(128): kv += kv_step(n)
    for n in range(NBIG): backlog.append(kv[6*n:6*n+6])
    seq = list(X)
    nb = 6*NBIG
    ki = 0
    for i in range(60):
        seq.append(wq_load(i))
        while ki < (i+1)*nb//60: seq.append(kv[ki]); ki += 1
    for j, l in enumerate(seq):
        if j == DA + 1: setup2()
        if j > DA: wait(DA - 1)
        issue(l); drain()
    lastwq = max(j for j, l in enumerate(S) if l.kind == "wq")
    while st["comp"] < lastwq:
        wait(DA - 1); issue(kv[ki]); ki += 1; drain()
    A(f"  v_lshlrev_b32 v56, 1, v1")
    A(f"  v_bfe_u32 v57, v0, 4, 1"); A(f"  v_lshl_add_u32 v56, v57, 4, v56")
    A(f"  v_mul_u32_u24 v57, 768, v3"); A(f"  v_add_u32 v56, v56, v57")
    A(f"  s_mul_i32 s{sTMP}, s{sW}, 1536"); A(f"  v_add_u32 v56, s{sTMP}, v56")
    A("  s_mov_b32 exec_lo, 0x00ff00ff"); A("  s_mov_b32 exec_hi, 0xff00ff00")
    for t in range(3): A(f"  ds_write_b128 v56, {v4(ACC+4*t)} offset:{QP + 256*t}")
    A("  s_mov_b64 exec, -1")
    A("  v_lshlrev_b32 v57, 2, v0")
    A("  s_waitcnt lgkmcnt(0)"); A("  s_barrier")
    TQ = 232
    for k in range(3):
        for p in range(8): A(f"  ds_read_b32 v{TQ + 8*k + p}, v57 offset:{QP + 768*p + 256*k}")
    for r in range(12): A(f"  v_mov_b32 v{ACC+r}, 0")
    while ki < 6*NBIG + 11:
        wait(DA - 1); issue(kv[ki]); ki += 1
    A(f"  s_mul_i32 s{sTMP}, s{sW}, 384"); A(f"  v_lshlrev_b32 v58, 1, v0"); A(f"  v_add_u32 v58, s{sTMP}, v58")
    A(f"  v_add_u32 v59, s{sTMP}, v1")
    A("  s_waitcnt lgkmcnt(0)")
    for k in range(3):
        for p in range(1, 8): A(f"  v_add_f32 v{TQ+8*k}, v{TQ+8*k}, v{TQ+8*k+p}")
        A(f"  v_cvt_pk_bf16_f32 v{TQ+8*k}, v{TQ+8*k}, v{TQ+8*k}")
        A(f"  ds_write_b16 v58, v{TQ+8*k} offset:{QB + 128*k}")
    A(f"  v_add_u32 v60, v59, v8"); A(f"  v_add_u32 v61, v59, v9")
    A("  s_waitcnt lgkmcnt(0)")
    A(f"  ds_read_b128 {v4(Q)}, v60 offset:{QB}"); A(f"  ds_read_b128 {v4(Q+4)}, v60 offset:{QB+128}"); A(f"  ds_read_b128 {v4(Q+8)}, v61 offset:{QB}")
    A("  s_waitcnt lgkmcnt(0)")
    qready[0] = True
    drain()
    wi = 0; cnt = 0
    while wi < 60:
        wait(DT - 1); issue(kv[ki]); ki += 1; drain(); cnt += 1
        while wi < 60 and wi < cnt*wo_per_step//6:
            l = wo_load(wi); key = (l.dstp, l.dst)
            if key in owner and not owner[key].done: break
            wait(DT - 1); issue(l); l.done = True; wi += 1; drain()
    lastwo = len(S) - 1
    while True:
        wait(D - 1); issue(kv[ki]); ki += 1; drain()
        nxt = S[len(S) - D]
        if len(S) - D > lastwo and nxt.kind == "k" and nxt.t == 0 and nxt.step % 2 == 0 and not backlog and cptr[0] == len(S) - D: break
    n0 = nxt.step
    niter = (126 - n0)//2
    nread = [l for l in kv[ki:ki+12] if any("readlane" in p for p in l.pre)]
    assert len(nread) == 1
    k0 = (nread[0].step + 1 - 2)//2
    A(f"  s_mov_b32 s{sIDX}, {k0}")
    pre = L; L = []; A = L.append
    A("L_loop:")
    for j in range(12):
        o = kv[ki + j]
        l = kv_load(o.step, o.kind == "v", o.t, loop=True)
        wait(D - 1); issue(l); drain()
    A(f"  s_cmp_lt_u32 s{sIDX}, {k0 + niter}"); A("  s_cbranch_scc1 L_loop")
    body = L; L = []; A = L.append
    ki += 12*niter
    while ki < 768:
        wait(D - 1); issue(kv[ki]); ki += 1; drain()
    for n in range(D - 1, -1, -1):
        wait(n); drain()
    assert cptr[0] == len(S)
    if stamps: A("  s_memrealtime s[82:83]")
    A(f"  v_add_f32_dpp v{VLS}, v{VLS}, v{VLS} row_ror:8 row_mask:0xf bank_mask:0xf")
    A(f"  v_lshlrev_b32 v57, 8, v3"); A(f"  v_add_u32 v57, v56, v57")
    A(f"  v_lshl_add_u32 v58, v9, 1, v56")
    A(f"  v_lshrrev_b32 v59, 1, v0"); A(f"  s_lshl_b32 s{sTMP}, s{sW}, 5"); A(f"  v_add_u32 v59, s{sTMP}, v59")
    A(f"  v_mov_b32 v60, v{VNML}"); A(f"  v_mov_b32 v61, v{VLS}")
    A("  s_mov_b32 exec_lo, 0x00ff00ff"); A("  s_mov_b32 exec_hi, 0xff00ff00")
    A(f"  ds_write_b128 v57, {v4(ACC)} offset:{OP}"); A(f"  ds_write_b128 v57, {v4(ACC+4)} offset:{OP+256}"); A(f"  ds_write_b128 v58, {v4(ACC+8)} offset:{OP}")
    A("  s_mov_b32 exec_lo, 0x00010001"); A("  s_mov_b32 exec_hi, 0x00010001")
    A(f"  ds_write_b64 v59, v[60:61] offset:{ML}")
    A("  s_mov_b64 exec, -1")
    A(f"  v_mov_b32 v57, 0")
    A(f"  s_mul_i32 s{sTMP}, s{sW}, 192"); A(f"  v_lshlrev_b32 v58, 2, v0"); A(f"  v_add_u32 v58, s{sTMP}, v58")
    A("  s_waitcnt lgkmcnt(0)"); A("  s_barrier")
    E = 112
    for k in range(8): A(f"  ds_read_b128 {v4(E+4*k)}, v57 offset:{ML+16*k}")
    for p in range(8): A(f"  ds_read_b32 v{E+32+p}, v58 offset:{OP+768*p}")
    OA = 64
    for r in range(20): A(f"  v_mov_b32 v{OA+r}, 0")
    A("  s_waitcnt lgkmcnt(8)")
    A(f"  v_min_f32 v{VTMP}, v{E}, v{E+8}"); A(f"  v_min3_f32 v{VTMP}, v{E+16}, v{E+24}, v{VTMP}")
    for w in range(4):
        A(f"  v_sub_f32 v{E+8*w}, v{VTMP}, v{E+8*w}"); A(f"  v_exp_f32 v{E+8*w}, v{E+8*w}")
        A(f"  v_add_f32 v{E+8*w+1}, v{E+8*w+1}, v{E+8*w+3}"); A(f"  v_add_f32 v{E+8*w+5}, v{E+8*w+5}, v{E+8*w+7}"); A(f"  v_add_f32 v{E+8*w+1}, v{E+8*w+1}, v{E+8*w+5}")
    A(f"  v_mul_f32 v{VP}, v{E}, v{E+1}")
    for w in range(1, 4): A(f"  v_fma_f32 v{VP}, v{E+8*w}, v{E+8*w+1}, v{VP}")
    A(f"  v_rcp_f32 v{VP}, v{VP}")
    A("  s_waitcnt lgkmcnt(0)")
    for w in range(4): A(f"  v_add_f32 v{E+32+2*w}, v{E+32+2*w}, v{E+33+2*w}")
    A(f"  v_mul_f32 v{VS}, v{E}, v{E+32}")
    for w in range(1, 4): A(f"  v_fma_f32 v{VS}, v{E+8*w}, v{E+32+2*w}, v{VS}")
    A(f"  v_mul_f32 v{VS}, v{VS}, v{VP}")
    A(f"  v_cvt_pk_bf16_f32 v{VS}, v{VS}, v{VS}")
    A(f"  s_lshl_b32 s{sTMP}, s{sW}, 7"); A(f"  v_lshlrev_b32 v58, 1, v0"); A(f"  v_add_u32 v58, s{sTMP}, v58")
    A(f"  ds_write_b16 v58, v{VS} offset:{OB}")
    A(f"  v_mul_u32_u24 v59, 24, v4"); A(f"  v_add_u32 v59, s{sTMP}, v59")
    A("  s_waitcnt lgkmcnt(0)")
    for k in range(3): A(f"  ds_read_b64 v[{Q+2*k}:{Q+2*k+1}], v59 offset:{OB+8*k}")
    A(f"  v_lshlrev_b32 v57, 1, v1"); A(f"  v_bfe_u32 v58, v0, 4, 1"); A(f"  v_lshl_add_u32 v57, v58, 4, v57"); A(f"  v_lshl_add_u32 v57, v3, 8, v57")
    A(f"  s_mul_i32 s{sTMP}, s{sW}, 2560"); A(f"  v_add_u32 v57, s{sTMP}, v57")
    A("  s_waitcnt lgkmcnt(0)")
    for rb in range(12):
        sel = SEL if rb % 2 == 0 else ACC
        A(f"  v_perm_b32 v{VP}, v{Q + rb//2}, v{Q + rb//2}, s{sPHI if rb % 2 else sPLO}")
        for k in range(4): A(f"  v_and_b32 v{sel+k}, v{VP}, v{MK+k}")
        for tp in range(5):
            A(f"  v_mfma_f32_16x16x32_bf16 {v4(OA+4*tp)}, {v4(sel)}, {v4(wo_reg(rb*5+tp),'a')}, {v4(OA+4*tp)}")
    A("  s_mov_b32 exec_hi, 0")
    for tp in range(5): A(f"  ds_write_b128 v57, {v4(OA+4*tp)} offset:{FP+512*tp}")
    A("  s_mov_b64 exec, -1")
    A(f"  s_lshl_b32 s{sTMP}, s{sW}, 10"); A(f"  v_lshlrev_b32 v58, 4, v0"); A(f"  v_add_u32 v58, s{sTMP}, v58")
    A("  s_waitcnt lgkmcnt(0)"); A("  s_barrier")
    A(f"  s_cmp_eq_u32 s{sW}, 3"); A("  s_cbranch_scc1 L_skipst")
    for w in range(4): A(f"  ds_read_b128 {v4(E+4*w)}, v58 offset:{FP+2560*w}")
    A(f"  s_mul_i32 s{sTMP}, s{sH}, 2560")
    A(f"  v_cmp_gt_u32 vcc, 2560, v58")
    A("  s_waitcnt lgkmcnt(0)")
    for r in range(4):
        A(f"  v_add_f32 v{E+r}, v{E+r}, v{E+4+r}"); A(f"  v_add_f32 v{E+8+r}, v{E+8+r}, v{E+12+r}"); A(f"  v_add_f32 v{E+r}, v{E+r}, v{E+8+r}")
    A("  s_mov_b64 exec, vcc")
    A(f"  buffer_store_dwordx4 {v4(E)}, v58, {srd(SWS)}, s{sTMP} offen sc1")
    A("  s_mov_b64 exec, -1")
    A("  s_waitcnt vmcnt(0)")
    A("L_skipst:")
    A("  s_barrier")
    A(f"  v_mov_b32 v59, 0")
    A(f"  s_cmp_lg_u32 s{sW}, 0"); A("  s_cbranch_scc1 L_skipat")
    A(f"  s_lshl_b32 s{sTMP}, s{sB}, 2")
    A("  v_mov_b32 v60, 1")
    A("  s_mov_b64 exec, 1")
    A(f"  buffer_atomic_add v60, v59, {srd(SDBG)}, s{sTMP} offen sc0 sc1")
    A("  s_waitcnt vmcnt(0)")
    A(f"  ds_write_b32 v59, v60 offset:{FL}")
    A("  s_mov_b64 exec, -1")
    A("  s_waitcnt lgkmcnt(0)")
    A("L_skipat:")
    A("  s_barrier")
    A(f"  ds_read_b32 v60, v59 offset:{FL}")
    A("  s_waitcnt lgkmcnt(0)")
    A(f"  v_readfirstlane_b32 s{sTMP}, v60")
    A(f"  s_cmp_lg_u32 s{sTMP}, 31"); A("  s_cbranch_scc1 L_fin")
    A(f"  v_lshlrev_b32 v57, 4, v0")
    A(f"  s_mul_i32 s{sTMP}, s{sW}, 20480")
    for k in range(20):
        if k and k % 4 == 0: A(f"  s_add_u32 s{sTMP}, s{sTMP}, 4096")
        o = (k % 4)*1024
        A(f"  buffer_load_dwordx4 {v4(E+4*k)}, v57, {srd(SWS)}, s{sTMP} offen" + (f" offset:{o}" if o else "") + " sc1")
    A(f"  s_mul_i32 s{sTMP}, s{sW}, 5120"); A(f"  v_add_u32 v57, s{sTMP}, v57")
    for k in range(5, 20):
        A(f"  s_waitcnt vmcnt({19-k})")
        for r in range(4): A(f"  v_add_f32 v{E+4*(k%5)+r}, v{E+4*(k%5)+r}, v{E+4*k+r}")
    for k in range(5): A(f"  ds_write_b128 v57, {v4(E+4*k)} offset:{RP+1024*k}")
    A("  s_waitcnt lgkmcnt(0)"); A("  s_barrier")
    A(f"  s_cmp_eq_u32 s{sW}, 3"); A("  s_cbranch_scc1 L_fin")
    for p in range(8): A(f"  ds_read_b128 {v4(E+4*p)}, v58 offset:{RP+2560*p}")
    A(f"  v_lshrrev_b32 v58, 1, v58")
    A("  s_waitcnt lgkmcnt(0)")
    for r in range(4):
        for p in range(1, 8): A(f"  v_add_f32 v{E+r}, v{E+r}, v{E+4*p+r}")
    A(f"  v_cvt_pk_bf16_f32 v{E}, v{E}, v{E+1}"); A(f"  v_cvt_pk_bf16_f32 v{E+1}, v{E+2}, v{E+3}")
    A(f"  buffer_store_dwordx2 v[{E}:{E+1}], v58, {srd(SOUT)}, 0 offen")
    A("  s_waitcnt vmcnt(0)")
    A("L_fin:")
    if stamps:
        A("  s_memrealtime s[84:85]")
        A("  s_getreg_b32 s86, hwreg(HW_REG_XCC_ID)")
        A("  s_waitcnt lgkmcnt(0)")
        A(f"  s_lshl_b32 s{sTMP}, s2, 2"); A(f"  s_add_u32 s{sTMP}, s{sTMP}, s{sW}"); A(f"  s_lshl_b32 s{sTMP}, s{sTMP}, 4")
        A(f"  s_mov_b32 s{SWS}, s54"); A(f"  s_mov_b32 s{SWS+1}, s55"); A(f"  s_mov_b32 s{SWS+2}, 0x100000"); A(f"  s_mov_b32 s{SWS+3}, 0x20000")
        A("  v_mov_b32 v4, s80"); A(f"  v_mov_b32 v5, s{84 if stamps == 2 else 82}"); A("  v_mov_b32 v6, s86"); A("  v_mov_b32 v7, s84"); A("  v_mov_b32 v3, 0")
        A("  s_mov_b64 exec, 1"); A(f"  buffer_store_dwordx4 v[4:7], v3, {srd(SWS)}, s{sTMP} offen"); A("  s_waitcnt vmcnt(0)")
    A("L_end:"); A("  s_endpgm")
    post = L
    allp = pad(pre + body + post)
    i0 = allp.index("L_loop:"); i1 = allp.index("  s_cbranch_scc1 L_loop")
    check_loop(allp[i0:i1+1])
    T = [HDR.rstrip("\n"), f"; @launch grid=(256,1,1) block=(256,1,1) lds={LDS}",
         '.amdgcn_target "amdgcn-amd-amdhsa--gfx950"', ".text", f".globl {NAME}", ".p2align 8", f".type {NAME},@function", f"{NAME}:"]
    T += allp + rare
    T += ['.section .rodata,"a"', ".p2align 6", f".amdhsa_kernel {NAME}", "  .amdhsa_next_free_vgpr 512", "  .amdhsa_next_free_sgpr 102",
          "  .amdhsa_accum_offset 256", "  .amdhsa_group_segment_fixed_size 0", "  .amdhsa_kernarg_size 64", "  .amdhsa_user_sgpr_count 2",
          "  .amdhsa_user_sgpr_kernarg_segment_ptr 1", "  .amdhsa_system_sgpr_workgroup_id_x 1", ".end_amdhsa_kernel"]
    open(fn, "w").write("\n".join(T) + "\n")
    return fn
if __name__ == "__main__":
    from build import build
    if len(sys.argv) > 1 and sys.argv[1].endswith(".py"):
        os.makedirs("k", exist_ok=True)
        cfgs = eval(open(sys.argv[1]).read())
        outs = []
        for n, kw in cfgs.items():
            gen(f"k/{n}.s", **kw); build(f"k/{n}.s", quiet=True); outs.append(f"k/{n}.co")
        print(" ".join(outs))
    else:
        fn = "standalone__gqa_block_cached__decode.s"
        gen(fn); build(fn, "main.co")
```

```python
import sys, os
from hz import pad, check_loop
NAME = "standalone__gqa_block_cached__decode_kernel"
HDR = open("standalone__gqa_block_cached__decode.s.ref").read().split("; Override launch")[0]
import struct
def f2u(f): return struct.unpack("<I", struct.pack("<f", f))[0]
LOG2E = 1.4426950408889634
SCALE = 192 ** -0.5

def mulshift(div, maxv):
    for sh in range(4, 24):
        m = (1 << sh) // div + 1
        if m * maxv < (1 << 24) * 256 and m < (1 << 24) and all(((v * m) >> sh) == v // div for v in range(maxv + 1)):
            if m * maxv < (1 << 32): return m, sh
    raise Exception("no mulshift")

QP = 0
QB = 6144
OP = 7680
ML = 13824
OB = 13952
FP = 14464
FL = 24704
RP = 24720 + 16
LDS = RP + 20480

def gen(fn, D=5, DA=8, DT=8, C=1, R1=63, R2=3, stamps=False, kvflags="nt", wo_per_step=3, mimic=True, NBIG=10, wflags="nt", badmap=False, NP=0, PPOS=0, lin=False, vers=None, ctl=None, SS=0, GN=16, CPL=3, U=4, KP=32, BASE=3.0, BIAS=0.0, KI=0, ILO=1.0, IHI=6.0, LST=4352, MIX=0, FAKE=0, FPOS=54, AMODE=0, DCOMP=0, FSH=None, PB=0.0, KW=0, TK=None):
    L = []; A = L.append
    rare = []
    VA0, VA2, VL0, VL2, VT = 10, 11, 12, 13, 14
    MK = 16; Q = 20; ACC = 32; SEL = 44
    VS, VTMP, VM, VNML, VLS, VP, VWQ, VWO = 48, 49, 50, 51, 52, 53, 54, 55
    RK, RV, BK = 64, 88, 112
    VPL, VPS, VPG, VPV, VZ = 15, 62, 63, 61, 5
    SPG = 96; sPH = 78; sBASE = 79
    SK, SV, SWQ, SWO, SX, SWS, SOUT, SDBG = 8, 12, 16, 20, 24, 28, 32, 36
    sW, sB, sH, sBH, sOFF, sT, sIDX, sL0, sL1, sLOG, sSC, sPLO, sPHI, sTMP, sTMP2, sWOFF, sHI16 = 56, 57, 58, 59, 60, 61, 62, 63, 64, 65, 66, 67, 68, 69, 70, 71, 72
    def srd(n): return f"s[{n}:{n+3}]"
    def v4(n, p="v"): return f"{p}[{n}:{n+3}]"

    A(f"  s_cmp_ge_u32 s2, 256"); A("  s_cbranch_scc1 L_end")
    A("  s_load_dwordx16 s[40:55], s[0:1], 0")
    def stamp(k, ss=0):
        if SS == 1 and ss == 0 and k in (1, 2, 3): return
        if ss and ss != SS: return
        if stamps: A(f"  s_memrealtime s[{80+2*k}:{81+2*k}]")
    stamp(0)
    A("  v_lshrrev_b32 v1, 6, v0"); A(f"  v_readfirstlane_b32 s{sW}, v1")
    A("  v_and_b32 v0, 63, v0")
    A(f"  s_and_b32 s{sH}, s2, 7"); A(f"  s_lshl_b32 s{sH}, s{sH}, 2"); A(f"  s_bfe_u32 s{sTMP}, s2, {3 | (2 << 16)}"); A(f"  s_add_u32 s{sH}, s{sH}, s{sTMP}")
    A(f"  s_lshr_b32 s{sB}, s2, 5")
    if badmap: A(f"  s_and_b32 s{sB}, s2, 7"); A(f"  s_lshr_b32 s{sH}, s2, 3")
    A(f"  s_lshl_b32 s{sBH}, s{sB}, 5"); A(f"  s_add_u32 s{sBH}, s{sBH}, s{sH}")
    A("  v_and_b32 v1, 7, v0"); A("  v_lshlrev_b32 v1, 4, v1"); A("  v_lshrrev_b32 v2, 3, v0"); A("  v_and_b32 v3, 1, v2"); A("  v_lshrrev_b32 v4, 4, v0")
    A("  v_mul_u32_u24 v5, 40, v2")
    A(f"  v_mul_u32_u24 v{VWQ}, {20*12288}, v2"); A(f"  v_add_u32 v{VWQ}, v{VWQ}, v1")
    A("  v_add_u32 v6, 1, v2"); A("  v_mul_u32_u24 v6, 11, v6"); A("  v_lshrrev_b32 v6, 5, v6"); A("  v_mul_u32_u24 v6, 84, v6")
    A("  v_mul_u32_u24 v7, 85, v2"); A("  v_add_u32 v7, 84, v7"); A("  v_sub_u32 v7, v7, v6"); A("  v_mul_u32_u24 v7, 384, v7"); A("  v_add_u32 v7, v7, v1")
    if lin: A("  v_mul_u32_u24 v7, 384, v2"); A("  v_add_u32 v7, v7, v1")
    A("  v_lshlrev_b32 v8, 7, v3")
    A("  v_lshlrev_b32 v9, 8, v3"); A("  v_sub_u32 v9, 256, v9")
    A(f"  v_add_u32 v{VL0}, v7, v8"); A(f"  v_add_u32 v{VL2}, v7, v9")
    A(f"  s_mul_i32 s{sL0}, s{sW}, {2*196608}"); A(f"  s_add_u32 s{sL1}, s{sL0}, 196608")
    if lin: A(f"  s_mul_i32 s{sL0}, s{sW}, 6144"); A(f"  s_add_u32 s{sL0}, s{sL0}, {504*3072}"); A(f"  s_add_u32 s{sL1}, s{sL0}, 3072")
    A("  s_waitcnt lgkmcnt(0)")
    A(f"  s_mul_i32 s{sTMP}, s{sB}, 1280"); A(f"  s_mul_i32 s{sTMP2}, s{sW}, 320"); A(f"  s_add_u32 s{sTMP}, s{sTMP}, s{sTMP2}")
    A(f"  s_add_u32 s{SX}, s40, s{sTMP}"); A(f"  s_addc_u32 s{SX+1}, s41, 0"); A(f"  s_mov_b32 s{SX+2}, 320"); A(f"  s_mov_b32 s{SX+3}, 0x20000")
    A(f"  s_mul_i32 s{sTMP}, s{sH}, 384"); A(f"  s_mul_i32 s{sTMP2}, s{sW}, {160*12288}"); A(f"  s_add_u32 s{sTMP}, s{sTMP}, s{sTMP2}")
    A(f"  s_add_u32 s{SWQ}, s46, s{sTMP}"); A(f"  s_addc_u32 s{SWQ+1}, s47, 0"); A(f"  s_mov_b32 s{SWQ+2}, {159*12288+384}"); A(f"  s_mov_b32 s{SWQ+3}, 0x20000")
    A(f"  s_mul_i32 s{sTMP}, s{sBH}, 1572864")
    A(f"  s_add_u32 s{SK}, s42, s{sTMP}"); A(f"  s_addc_u32 s{SK+1}, s43, 0"); A(f"  s_mov_b32 s{SK+2}, 1572864"); A(f"  s_mov_b32 s{SK+3}, 0x20000")
    A(f"  s_add_u32 s{SV}, s44, s{sTMP}"); A(f"  s_addc_u32 s{SV+1}, s45, 0"); A(f"  s_mov_b32 s{SV+2}, 1572864"); A(f"  s_mov_b32 s{SV+3}, 0x20000")

    def setup2():
        A(f"  s_mul_i32 s{sTMP}, s{sH}, {192*1280}"); A(f"  s_mul_i32 s{sTMP2}, s{sW}, {48*1280}"); A(f"  s_add_u32 s{sTMP}, s{sTMP}, s{sTMP2}")
        A(f"  s_add_u32 s{SWO}, s48, s{sTMP}"); A(f"  s_addc_u32 s{SWO+1}, s49, 0"); A(f"  s_mov_b32 s{SWO+2}, {48*1280}"); A(f"  s_mov_b32 s{SWO+3}, 0x20000")
        A(f"  s_mul_i32 s{sTMP}, s{sB}, {32*2560}"); A(f"  s_add_u32 s{sTMP}, s{sTMP}, 0x100000")
        A(f"  s_add_u32 s{SWS}, s54, s{sTMP}"); A(f"  s_addc_u32 s{SWS+1}, s55, 0"); A(f"  s_mov_b32 s{SWS+2}, {32*2560}"); A(f"  s_mov_b32 s{SWS+3}, 0x20000")
        A(f"  s_mul_i32 s{sTMP}, s{sB}, 1280")
        A(f"  s_add_u32 s{SOUT}, s50, s{sTMP}"); A(f"  s_addc_u32 s{SOUT+1}, s51, 0"); A(f"  s_mov_b32 s{SOUT+2}, 1280"); A(f"  s_mov_b32 s{SOUT+3}, 0x20000")
        A(f"  s_mov_b32 s{SDBG}, s52"); A(f"  s_mov_b32 s{SDBG+1}, s53"); A(f"  s_mov_b32 s{SDBG+2}, 256"); A(f"  s_mov_b32 s{SDBG+3}, 0x20000")
        A(f"  s_mov_b32 s{sLOG}, {hex(f2u(LOG2E))}"); A(f"  s_mov_b32 s{sSC}, {hex(f2u(SCALE))}")
        A(f"  s_mov_b32 s{sPLO}, 0x01000100"); A(f"  s_mov_b32 s{sPHI}, 0x03020302"); A(f"  s_mov_b32 s{sHI16}, 0xffff0000")
        A("  v_mul_u32_u24 v6, 384, v4"); A(f"  v_mul_u32_u24 v7, {(4 if lin else 85)*384}, v3"); A("  v_add_u32 v6, v6, v7"); A("  v_add_u32 v6, v6, v1")
        A(f"  v_add_u32 v{VA0}, v6, v8"); A(f"  v_add_u32 v{VA2}, v6, v9")
        A(f"  v_mul_u32_u24 v{VWO}, {12*1280}, v4"); A(f"  v_add_u32 v{VWO}, v{VWO}, v8"); A(f"  v_add_u32 v{VWO}, v{VWO}, v1")
        A("  v_and_b32 v6, 1, v0"); A("  v_lshlrev_b32 v6, 4, v6"); A("  v_mov_b32 v7, 0xffff"); A("  v_lshlrev_b32 v7, v6, v7")
        A("  v_bfe_u32 v6, v0, 1, 2")
        for k in range(4):
            A(f"  v_cmp_eq_u32 vcc, {k}, v6"); A(f"  v_cndmask_b32 v{MK+k}, 0, v7, vcc")
        A(f"  s_bfe_u32 s{sTMP}, s2, {3 | (3 << 16)}"); A(f"  s_mul_i32 s{sTMP}, s{sTMP}, {R1}")
        A(f"  s_bfe_u32 s{sTMP2}, s2, {6 | (2 << 16)}"); A(f"  s_mul_i32 s{sTMP2}, s{sTMP2}, {R2}"); A(f"  s_add_u32 s{sTMP}, s{sTMP}, s{sTMP2}")
        A(f"  s_mul_i32 s{sTMP2}, s{sW}, {C}"); A(f"  s_add_u32 s{sTMP}, s{sTMP}, s{sTMP2}")
        assert 7*R1 + 3*R2 < 504
        m21, s21 = mulshift(21, 1100); m3, s3 = mulshift(3, 60)
        for half in range(2):
            A("  v_lshlrev_b32 v6, 1, v0")
            if half: A("  v_add_u32 v6, 1, v6")
            if C == 1: A("  v_lshlrev_b32 v6, 2, v6")
            else:
                mc, sc = mulshift(C, 128)
                A(f"  v_mul_u32_u24 v7, {mc}, v6"); A(f"  v_lshrrev_b32 v7, {sc}, v7"); A(f"  v_mul_u32_u24 v7, {3*C}, v7"); A("  v_add_u32 v6, v6, v7")
            A(f"  v_add_u32 v6, s{sTMP}, v6")
            A("  v_subrev_u32 v7, 504, v6"); A("  v_cmp_le_u32 vcc, 504, v6"); A("  v_cndmask_b32 v6, v6, v7, vcc")
            A(f"  v_mul_u32_u24 v7, {m21}, v6"); A(f"  v_lshrrev_b32 v7, {s21}, v7")
            A(f"  v_mul_u32_u24 v56, {m3}, v7"); A(f"  v_lshrrev_b32 v56, {s3}, v56")
            A("  v_mul_u32_u24 v7, 87, v7"); A("  v_sub_u32 v7, v7, v56"); A("  v_lshl_add_u32 v7, v6, 2, v7")
            if lin: A("  v_lshlrev_b32 v7, 3, v6")
            if half == 0: A(f"  v_and_b32 v{VT}, 0xffff, v7")
            else: A(f"  v_lshl_or_b32 v{VT}, v7, 16, v{VT}")
        if ctl == "wg":
            lg = GN.bit_length() - 1
            A(f"  s_bfe_u32 s{sPH}, s2, {1 | (2 << 16)}"); A(f"  s_lshr_b32 s{sTMP}, s2, 3"); A(f"  s_mul_i32 s{sTMP}, s{sTMP}, {max(U//2,1)}"); A(f"  s_add_u32 s{sPH}, s{sPH}, s{sTMP}")
            A(f"  s_mul_i32 s{sTMP}, s{sW}, {U}"); A(f"  s_add_u32 s{sPH}, s{sPH}, s{sTMP}")
            A(f"  s_lshr_b32 s{sTMP}, s2, {lg}")
            A(f"  s_mul_i32 s{sTMP}, s{sTMP}, 4352"); A(f"  s_add_u32 s{sTMP}, s{sTMP}, 0x200000")
            A(f"  s_add_u32 s{SPG}, s54, s{sTMP}"); A(f"  s_addc_u32 s{SPG+1}, s55, 0"); A(f"  s_mov_b32 s{SPG+2}, 4"); A(f"  s_mov_b32 s{SPG+3}, 0x20000")
            A(f"  v_lshlrev_b32 v{VPS}, 2, v0")
            A(f"  v_mov_b32 v{VPL}, {round(BASE)}"); A(f"  v_mov_b32 v{VZ}, 0"); A(f"  ds_write_b32 v{VZ}, v{VPL} offset:{FL+4}")
        if ctl == "rk":
            lg = GN.bit_length() - 1
            A(f"  s_lshr_b32 s{sTMP}, s2, {lg}")
            A(f"  s_mul_i32 s{sPH}, s{sW}, {U}")
            if not MIX: A(f"  s_add_u32 s{sPH}, s{sPH}, s{sTMP}")
            A(f"  s_mul_i32 s{sTMP}, s{sTMP}, {64*LST + 256}"); A(f"  s_add_u32 s{sTMP}, s{sTMP}, 0x200000")
            A(f"  s_add_u32 s{SPG}, s54, s{sTMP}"); A(f"  s_addc_u32 s{SPG+1}, s55, 0"); A(f"  s_mov_b32 s{SPG+2}, {64*LST}"); A(f"  s_mov_b32 s{SPG+3}, 0x20000")
            A(f"  s_getreg_b32 s{sBASE}, hwreg(HW_REG_XCC_ID)"); A(f"  s_and_b32 s{sBASE}, s{sBASE}, 1")
            A(f"  s_mul_i32 s{sBASE}, s{sBASE}, {round(2*PB*64)}"); A(f"  s_add_u32 s{sBASE}, s{sBASE}, {round((BASE+0.5-PB)*64)}")
            A(f"  v_mov_b32 v58, s{sBASE}"); A(f"  v_mov_b32 v59, s{sBASE}"); A(f"  v_mov_b32 v{VZ}, 0"); A(f"  ds_write_b64 v{VZ}, v[58:59] offset:{FL+8}")
            A(f"  ds_write_b32 v{VZ}, v{VZ} offset:{FL+16}")
            A(f"  s_lshl_b32 s{sTMP}, s2, 2"); A(f"  s_add_u32 s{sTMP}, s{sTMP}, s{sW}")
            A(f"  v_xor_b32 v6, s{sTMP}, v0"); A(f"  v_and_b32 v6, {min(4*GN,64)-1}, v6"); A(f"  v_cmp_eq_u32 vcc, 0, v6")
            A(f"  v_mul_u32_u24 v6, {LST}, v0")
            A(f"  s_mov_b64 exec, vcc")
            A(f"  buffer_store_dword v{VZ}, v6, {srd(SPG)}, 0 offen sc1")
            A(f"  s_mov_b64 exec, -1")
            if MIX:
                A(f"  s_add_u32 s{SPG}, s54, 0x200000"); A(f"  s_addc_u32 s{SPG+1}, s55, 0"); A(f"  s_mov_b32 s{SPG+2}, {(256//GN)*(64*LST+256)}")
                A(f"  s_and_b32 s100, s2, {GN-1}"); A(f"  s_mul_i32 s100, s100, {MIX}"); A(f"  s_lshr_b32 s101, s2, {lg}")
        if ctl == "fb":
            lg = GN.bit_length() - 1
            A(f"  s_and_b32 s{sTMP2}, s2, 7"); A(f"  s_lshr_b32 s{sPH}, s{sTMP2}, 1"); A(f"  s_add_u32 s{sPH}, s{sPH}, s{sW}")
            A(f"  s_mul_i32 s{sTMP2}, s{sTMP2}, s{sW}"); A(f"  s_mul_i32 s{sTMP2}, s{sTMP2}, {CPL}")
            A(f"  s_lshr_b32 s{sTMP}, s2, 3"); A(f"  s_add_u32 s{sTMP}, s{sTMP}, s{sTMP2}"); A(f"  s_and_b32 s{sTMP}, s{sTMP}, 31")
            A(f"  s_mul_i32 s{sTMP2}, s{sTMP}, {U//2}"); A(f"  s_add_u32 s{sPH}, s{sPH}, s{sTMP2}")
            A(f"  s_lshr_b32 s{sTMP}, s{sTMP}, {lg-3}"); A(f"  s_lshl_b32 s{sTMP}, s{sTMP}, 2"); A(f"  s_add_u32 s{sTMP}, s{sTMP}, s{sW}")
            A(f"  s_mul_i32 s{sTMP}, s{sTMP}, 4352"); A(f"  s_add_u32 s{sTMP}, s{sTMP}, 0x200000")
            A(f"  s_add_u32 s{SPG}, s54, s{sTMP}"); A(f"  s_addc_u32 s{SPG+1}, s55, 0"); A(f"  s_mov_b32 s{SPG+2}, 4"); A(f"  s_mov_b32 s{SPG+3}, 0x20000")
            A(f"  v_lshlrev_b32 v{VPS}, 2, v0")
        for r in range(12): A(f"  v_mov_b32 v{ACC+r}, 0")
        A(f"  v_mov_b32 v{VM}, 0xff800000"); A(f"  v_mov_b32 v{VNML}, 0x7f800000"); A(f"  v_mov_b32 v{VLS}, 0")

    class Ld: pass
    def mk(kind, step, t, dstp, dst, text, pre=()):
        l = Ld(); l.kind, l.step, l.t, l.dstp, l.dst, l.text, l.pre = kind, step, t, dstp, dst, text, list(pre); l.done = False; return l
    def kv_load(n, isv, t, loop=False):
        if n < NBIG:
            p, d = ("a", 12*n + 4*t) if isv else ("v", BK + 12*n + 4*t)
        else:
            p, d = "v", (RV if isv else RK) + 12*(n % 2) + 4*t
        pre = []
        if n < 2:
            so = f"s{sL0 + n}"; va = VL2 if t == 2 else VL0
        else:
            so = f"s{sOFF}"; va = VA2 if t == 2 else VA0
            if not isv and t == 0:
                if n % 2 == 0: pre += [f"  s_and_b32 s{sOFF}, s{sT}, 0xffff", f"  s_mul_i32 s{sOFF}, s{sOFF}, 384"]
                else: pre += [f"  s_lshr_b32 s{sOFF}, s{sT}, 16", f"  s_mul_i32 s{sOFF}, s{sOFF}, 384"]
        if n % 2 == 1 and not isv and t == 1 and n + 1 < 128:
            k = (n + 1 - 2) // 2
            if loop: pre += [f"  v_readlane_b32 s{sT}, v{VT}, s{sIDX}", f"  s_add_u32 s{sIDX}, s{sIDX}, 1"]
            else: pre += [f"  v_readlane_b32 s{sT}, v{VT}, {k}"]
        off = f" offset:128" if t == 1 else ""
        txt = f"  buffer_load_dwordx4 {v4(d,p)}, v{va}, {srd(SV if isv else SK)}, {so} offen{off} {kvflags}"
        return mk("v" if isv else "k", n, t, p, d, txt, pre)
    def kv_step(n, loop=False): return [kv_load(n, isv, t, loop) for isv in (0, 1) for t in range(3)]
    def wq_load(i):
        s, t = divmod(i, 3); d = 120 + 4*(i % 30)
        pre = [f"  s_mov_b32 s{sWOFF}, {s*12288}"] if t == 0 else []
        if FAKE and t == 0: pre = [f"  s_mul_i32 s{sWOFF}, s{sB}, {2*12288}"] if s == 0 else [f"  s_add_u32 s{sWOFF}, s{sWOFF}, 12288"]
        off = f" offset:{128*t}" if t else ""
        return mk("wq", s, t, "a", d, f"  buffer_load_dwordx4 {v4(d,'a')}, v{VWQ}, {srd(SWQ)}, s{sWOFF} offen{off} {wflags}", pre)
    def wo_reg(i): return (120 + 4*i) if i < 30 else 4*(i - 30)
    def wo_load(i):
        rb, tp = divmod(i, 5); d = wo_reg(i)
        pre = [f"  s_mov_b32 s{sWOFF}, {(rb//3)*3840}"] if i % 15 == 0 else []
        o = (rb % 3)*1280 + 256*tp
        off = f" offset:{o}" if o else ""
        return mk("wo", rb, tp, "a", d, f"  buffer_load_dwordx4 {v4(d,'a')}, v{VWO}, {srd(SWO)}, s{sWOFF} offen{off} {wflags}", pre)

    def selector(src):
        for k in range(4): A(f"  v_and_b32 v{SEL+k}, v{src}, v{MK+k}")
    uid = [0]
    def consume(l):
        l.done = True
        if l.kind == "wq":
            if l.t == 0:
                A(f"  v_perm_b32 v{VP}, v{Q + l.step//2}, v{Q + l.step//2}, s{sPHI if l.step % 2 else sPLO}")
                selector(VP)
            A(f"  v_mfma_f32_16x16x32_bf16 {v4(ACC+4*l.t)}, {v4(SEL)}, {v4(l.dst,l.dstp)}, {v4(ACC+4*l.t)}")
        elif l.kind == "k":
            for r in range(4):
                c = "0" if (l.t == 0 and r == 0) else f"v{VS}"
                A(f"  v_dot2_f32_bf16 v{VS}, v{l.dst+r}, v{Q+4*l.t+r}, {c}")
            if l.t == 2:
                A(f"  v_add_f32_dpp v{VS}, v{VS}, v{VS} quad_perm:[1,0,3,2] row_mask:0xf bank_mask:0xf")
                A(f"  v_add_f32_dpp v{VS}, v{VS}, v{VS} quad_perm:[2,3,0,1] row_mask:0xf bank_mask:0xf")
                A(f"  v_add_f32_dpp v{VS}, v{VS}, v{VS} row_half_mirror row_mask:0xf bank_mask:0xf")
                if mimic:
                    A(f"  v_cvt_pk_bf16_f32 v{VS}, v{VS}, v{VS}"); A(f"  v_and_b32 v{VS}, s{sHI16}, v{VS}")
                    A(f"  v_mul_f32 v{VS}, s{sSC}, v{VS}")
                    A(f"  v_cvt_pk_bf16_f32 v{VS}, v{VS}, v{VS}"); A(f"  v_and_b32 v{VS}, s{sHI16}, v{VS}")
                else:
                    A(f"  v_mul_f32 v{VS}, s{sSC}, v{VS}")
                u = uid[0]; uid[0] += 1
                A(f"  v_cmp_gt_f32 vcc, v{VS}, v{VM}"); A(f"  s_cbranch_vccnz L_rs{u}"); A(f"L_rb{u}:")
                A(f"  v_fma_f32 v{VP}, v{VS}, s{sLOG}, v{VNML}"); A(f"  v_exp_f32 v{VP}, v{VP}")
                A(f"  v_cvt_pk_bf16_f32 v{VTMP}, v{VP}, v{VP}"); A(f"  v_add_f32 v{VLS}, v{VLS}, v{VP}")
                selector(VTMP)
                R = [f"L_rs{u}:", "  s_nop 7",
                     f"  v_max_f32_dpp v{VTMP}, v{VS}, v{VS} row_ror:8 row_mask:0xf bank_mask:0xf",
                     f"  v_readlane_b32 s74, v{VTMP}, 0", f"  v_readlane_b32 s75, v{VTMP}, 16", f"  v_readlane_b32 s76, v{VTMP}, 32", f"  v_readlane_b32 s77, v{VTMP}, 48",
                     f"  v_max_f32 v{VM}, s74, v{VM}", f"  v_max_f32 v{VM}, s75, v{VM}", f"  v_max_f32 v{VM}, s76, v{VM}", f"  v_max_f32 v{VM}, s77, v{VM}",
                     f"  v_mul_f32 v{VTMP}, s{sLOG}, v{VM}",
                     f"  v_sub_f32 v{VP}, 0, v{VNML}",
                     f"  v_sub_f32 v{VP}, v{VP}, v{VTMP}", f"  v_exp_f32 v{VP}, v{VP}",
                     f"  v_sub_f32 v{VNML}, 0, v{VTMP}",
                     f"  v_mul_f32 v{VLS}, v{VLS}, v{VP}"]
                R += [f"  v_mul_f32 v{ACC+r}, v{ACC+r}, v{VP}" for r in range(12)]
                R += [f"  s_branch L_rb{u}"]
                rare.extend(pad(R))
        elif l.kind == "v":
            A(f"  v_mfma_f32_16x16x32_bf16 {v4(ACC+4*l.t)}, {v4(SEL)}, {v4(l.dst,l.dstp)}, {v4(ACC+4*l.t)}")

    S = []
    st = dict(comp=-1)
    owner = {}
    def wait(n):
        c = len(S) - 1 - n
        if c > st["comp"]:
            A(f"  s_waitcnt vmcnt({n})"); st["comp"] = c
    def issue(l):
        key = (l.dstp, l.dst)
        if key in owner: assert owner[key].done, (l.kind, l.step, l.t, owner[key].kind, owner[key].step)
        owner[key] = l
        for p in l.pre: A(p)
        A(l.text); S.append(l)
    cptr = [0]
    qready = [False]
    backlog = []
    def drain():
        while cptr[0] <= st["comp"]:
            l = S[cptr[0]]
            if l.kind in ("k", "v"):
                if l.step < NBIG: pass
                elif not qready[0]: break
                else:
                    consume(l)
                    if l.kind == "v" and l.t == 2 and backlog:
                        for x in backlog.pop(0): consume(x)
            elif l.kind == "wq": consume(l)
            elif l.kind == "x": l.done = True
            cptr[0] += 1

    X = [mk("x", 0, 0, "v", Q, f"  buffer_load_dwordx4 {v4(Q)}, v5, {srd(SX)}, 0 offen"),
         mk("x", 0, 1, "v", Q+4, f"  buffer_load_dwordx4 {v4(Q+4)}, v5, {srd(SX)}, 0 offen offset:16"),
         mk("x", 0, 2, "v", Q+8, f"  buffer_load_dwordx2 v[{Q+8}:{Q+9}], v5, {srd(SX)}, 0 offen offset:32")]
    kv = []
    for n in range(128): kv += kv_step(n)
    for n in range(NBIG): backlog.append(kv[6*n:6*n+6])
    seq = list(X)
    nb = 6*NBIG
    ki = 0
    if FAKE:
        for i in range(FAKE): seq.append(wq_load(i))
        while ki < FPOS: seq.append(kv[ki]); ki += 1
    for i in range(0 if FAKE else 60):
        seq.append(wq_load(i))
        while ki < (i+1)*nb//60: seq.append(kv[ki]); ki += 1
    if NP:
        stride = 1572864 // (4*NP)
        pre = [f"  v_lshlrev_b32 v62, 2, v0", f"  v_add_u32 v62, s{sW}, v62", f"  v_mul_u32_u24 v62, {stride}, v62", f"  v_add_u32 v62, {stride - 128}, v62"]
        pf = [mk("x", 0, 0, "v", 63, f"  buffer_load_dword v63, v62, {srd(SK)}, 0 offen nt", pre),
              mk("x", 0, 0, "v", 61, f"  buffer_load_dword v61, v62, {srd(SV)}, 0 offen nt")]
        seq = seq[:PPOS] + pf + seq[PPOS:]
    for j, l in enumerate(seq):
        if j == DA + 1: setup2()
        if j > DA: wait(DA - 1)
        issue(l); drain()
    lastwq = max(j for j, l in enumerate(S) if l.kind == "wq")
    while st["comp"] < lastwq:
        wait(DA - 1); issue(kv[ki]); ki += 1; drain()
    stamp(1)
    A(f"  v_lshlrev_b32 v56, 1, v1")
    A(f"  v_bfe_u32 v57, v0, 4, 1"); A(f"  v_lshl_add_u32 v56, v57, 4, v56")
    A(f"  v_mul_u32_u24 v57, 768, v3"); A(f"  v_add_u32 v56, v56, v57")
    A(f"  s_mul_i32 s{sTMP}, s{sW}, 1536"); A(f"  v_add_u32 v56, s{sTMP}, v56")
    A("  s_mov_b32 exec_lo, 0x00ff00ff"); A("  s_mov_b32 exec_hi, 0xff00ff00")
    for t in range(3): A(f"  ds_write_b128 v56, {v4(ACC+4*t)} offset:{QP + 256*t}")
    A("  s_mov_b64 exec, -1")
    A("  v_lshlrev_b32 v57, 2, v0")
    A("  s_waitcnt lgkmcnt(0)"); A("  s_barrier")
    TQ = 232
    for k in range(3):
        for p in range(8): A(f"  ds_read_b32 v{TQ + 8*k + p}, v57 offset:{QP + 768*p + 256*k}")
    for r in range(12): A(f"  v_mov_b32 v{ACC+r}, 0")
    while ki < 6*NBIG + 11:
        wait(DA - 1); issue(kv[ki]); ki += 1
    A(f"  s_mul_i32 s{sTMP}, s{sW}, 384"); A(f"  v_lshlrev_b32 v58, 1, v0"); A(f"  v_add_u32 v58, s{sTMP}, v58")
    A(f"  v_add_u32 v59, s{sTMP}, v1")
    A("  s_waitcnt lgkmcnt(0)")
    for k in range(3):
        for p in range(1, 8): A(f"  v_add_f32 v{TQ+8*k}, v{TQ+8*k}, v{TQ+8*k+p}")
        A(f"  v_cvt_pk_bf16_f32 v{TQ+8*k}, v{TQ+8*k}, v{TQ+8*k}")
        A(f"  ds_write_b16 v58, v{TQ+8*k} offset:{QB + 128*k}")
    A(f"  v_add_u32 v60, v59, v8"); A(f"  v_add_u32 v61, v59, v9")
    A("  s_waitcnt lgkmcnt(0)")
    A(f"  ds_read_b128 {v4(Q)}, v60 offset:{QB}"); A(f"  ds_read_b128 {v4(Q+4)}, v60 offset:{QB+128}"); A(f"  ds_read_b128 {v4(Q+8)}, v61 offset:{QB}")
    A("  s_waitcnt lgkmcnt(0)")
    stamp(2)
    qready[0] = True
    drain()
    if ctl in ("fb", "wg"):
        issue(mk("x", 0, 0, "v", VPG, f"  buffer_load_dword v{VPG}, v{VPS}, {srd(SPG)}, 0 offen sc1"))
    wi = 0; cnt = 0
    while wi < 60:
        wait(DT - 1); issue(kv[ki]); ki += 1; drain(); cnt += 1
        while wi < 60 and wi < cnt*wo_per_step//6:
            l = wo_load(wi); key = (l.dstp, l.dst)
            if key in owner and not owner[key].done: break
            wait(DT - 1); issue(l); l.done = True; wi += 1; drain()
    lastwo = len(S) - 1
    while True:
        wait(D - 1); issue(kv[ki]); ki += 1; drain()
        nxt = S[len(S) - D]
        if len(S) - D > lastwo and nxt.kind == "k" and nxt.t == 0 and nxt.step % 2 == 0 and not backlog and cptr[0] == len(S) - D: break
    n0 = nxt.step
    niter = (126 - n0)//2
    nread = [l for l in kv[ki:ki+12] if any("readlane" in p for p in l.pre)]
    assert len(nread) == 1
    k0 = (nread[0].step + 1 - 2)//2
    A(f"  s_mov_b32 s{sIDX}, {k0}")
    if FSH:
        A(f"  s_getreg_b32 s{sTMP}, hwreg(HW_REG_XCC_ID)"); A(f"  s_and_b32 s{sTMP}, s{sTMP}, 1")
        A(f"  s_cmp_eq_u32 s{sTMP}, 0"); A(f"  s_cselect_b32 s{sIDX}, {k0 - FSH[0]}, {k0 + FSH[1]}")
    stamp(3)
    sD = 73
    if ctl == "parity":
        A(f"  s_getreg_b32 s{sD}, hwreg(HW_REG_XCC_ID)"); A(f"  s_and_b32 s{sD}, s{sD}, 1")
    if ctl in ("fb", "wg"):
        A(f"  v_readfirstlane_b32 s{sBASE}, v{VPG}")
        A(f"  v_subrev_u32 v{VPG}, {GN // U // 2}, v{VPG}")
        A(f"  s_mov_b32 s{sD}, {round(BASE)}")
    if ctl == "rk":
        A(f"  v_mov_b32 v58, s{sBASE}"); A(f"  v_mov_b32 v59, s{sBASE}"); A(f"  v_mov_b32 v{VPG}, {GN//2}")
        if TK:
            tk = sorted(k0 + niter - r for r in TK if r <= niter)
            for w in range(4):
                m = sum(1 << t for i, t in enumerate(tk) if i % 4 == w)
                assert not (m & (m << 1))
                A(f"  s_cmp_eq_u32 s{sW}, {w}"); A(f"  s_cmov_b32 s40, {hex(m & 0xffffffff)}"); A(f"  s_cmov_b32 s41, {hex(m >> 32)}")
            A(f"  s_lshl_b64 s[42:43], s[40:41], 1")
        if KW:
            A(f"  v_cmp_eq_u32 vcc, 0, v0"); A(f"  v_cndmask_b32 v{VPL}, 0, {2*KW}, vcc") if 2*KW <= 64 else None
            A(f"  v_mov_b32 v{VPS}, {-5*KW}"); A(f"  v_lshlrev_b32 v57, 2, v0")
    pre = L; L = []; A = L.append
    nrare = len(rare)
    A("L_loop:")
    for j in range(12):
        o = kv[ki + j]
        l = kv_load(o.step, o.kind == "v", o.t, loop=True)
        if ctl == "wg" and j == 10: A(f"  ds_read_b32 v{VPL}, v{VZ} offset:{FL+4}")
        if ctl == "rk" and j == 10:
            A(f"  ds_read_b64 v[58:59], v{VZ} offset:{FL+8}")
            if KW: A(f"  ds_add_rtn_u32 v{VPS}, v57, v{VPL} offset:{FL+16}")
        wait(D - 1); issue(l); drain()
    A(f"  s_cmp_lt_u32 s{sIDX}, {k0 + niter}"); A("  s_cbranch_scc1 L_loop")
    body = L; L = []; A = L.append
    if vers:
        import re, math
        core = pad(body[1:-2]); rb = rare[nrare:]; del rare[nrare:]
        check_loop(core)
        body = ["L_disp:"]
        if ctl in ("fb", "wg"):
            if ctl == "wg": body += ["  s_waitcnt lgkmcnt(0)", f"  v_readfirstlane_b32 s{sD}, v{VPL}"]
            body += [f"  s_add_u32 s{sTMP}, s{sIDX}, s{sPH}", f"  s_and_b32 s{sTMP}, s{sTMP}, {(4*U if ctl == 'wg' else U)-1}",
                     f"  s_cmp_eq_u32 s{sTMP}, 0", "  s_cbranch_scc1 L_duty", f"  s_cmp_eq_u32 s{sTMP}, 1", "  s_cbranch_scc1 L_proc", "L_sel:"]
            R = ["L_duty:", f"  v_mov_b32 v{VPG}, 1",
                 f"  buffer_atomic_add v{VPG}, v{VPS}, {srd(SPG)}, 0 offen sc0 sc1", "  s_branch L_sel"]
            rare.extend(pad(R))
            M = GN // U
            c0 = round((BASE + 0.5) * 32 * M + KP * M * (BIAS + 1 + k0 - 0.5))
            R = ["L_proc:", f"  v_readfirstlane_b32 s{sTMP}, v{VPG}", f"  s_mul_i32 s{sTMP2}, s{sIDX}, {M}", f"  s_sub_i32 s{sTMP}, s{sTMP}, s{sBASE}",
                  f"  s_sub_i32 s{sTMP}, s{sTMP}, s{sTMP2}", f"  s_mul_i32 s{sTMP}, s{sTMP}, {KP}",
                  f"  s_add_i32 s{sTMP}, s{sTMP}, {c0}", f"  s_ashr_i32 s{sTMP}, s{sTMP}, {5 + M.bit_length() - 1}",
                  f"  s_max_i32 s{sTMP}, s{sTMP}, 0", f"  s_min_i32 s{sD}, s{sTMP}, {len(vers)-1}"]
            if ctl == "wg": R += [f"  v_mov_b32 v{VPL}, s{sD}", f"  ds_write_b32 v{VZ}, v{VPL} offset:{FL+4}"]
            R += ["  s_branch L_sel"]
            rare.extend(pad(R))
        if ctl == "rk":
            body += ["  s_waitcnt lgkmcnt(0)", f"  v_readfirstlane_b32 s{sD}, v58"]
            if TK:
                assert MIX and U == 1
                body += [f"  s_bitcmp1_b64 s[40:41], s{sIDX}", "  s_cbranch_scc1 L_duty", f"  s_bitcmp1_b64 s[42:43], s{sIDX}", "  s_cbranch_scc1 L_proc", "L_sel:"]
            else:
                body += [f"  s_add_u32 s{sTMP}, s{sIDX}, s{sPH}", f"  s_and_b32 s{sTMP}, s{sTMP}, {4*U-1}",
                     f"  s_cmp_eq_u32 s{sTMP}, 0", "  s_cbranch_scc1 L_duty", f"  s_cmp_eq_u32 s{sTMP}, 1", "  s_cbranch_scc1 L_proc", "L_sel:"]
            if KW:
                body += [f"  v_readfirstlane_b32 s{sTMP}, v{VPS}", f"  s_mul_i32 s{sTMP2}, s{sIDX}, {8*KW}", f"  s_sub_i32 s{sTMP}, s{sTMP}, s{sTMP2}",
                         f"  s_add_i32 s{sD}, s{sD}, s{sTMP}", f"  s_add_i32 s{sD}, s{sD}, {8*KW*(k0+1) - 3*KW}"]
            body += [f"  s_ashr_i32 s{sD}, s{sD}, 6", f"  s_max_i32 s{sD}, s{sD}, 0", f"  s_min_i32 s{sD}, s{sD}, {len(vers)-1}"]
            R = ["L_duty:", f"  v_mov_b32 v{VPG}, 1", f"  s_mul_i32 s{sTMP}, s{sIDX}, {LST}"]
            if MIX:
                R += [f"  s_lshr_b32 s{sTMP2}, s{sIDX}, {U.bit_length()-1}", f"  s_mul_i32 s{sTMP2}, s{sTMP2}, s100", f"  s_add_u32 s{sTMP2}, s{sTMP2}, s101",
                      f"  s_and_b32 s{sTMP2}, s{sTMP2}, {256//GN-1}", f"  s_mul_i32 s{sTMP2}, s{sTMP2}, {64*LST+256}", f"  s_add_u32 s{sTMP}, s{sTMP}, s{sTMP2}"]
            R += ["  s_mov_b64 exec, 1",
                 [f"  buffer_atomic_add v{VPG}, v{VZ}, {srd(SPG)}, s{sTMP} offen sc0 sc1", f"  buffer_load_dword v{VPG}, v{VZ}, {srd(SPG)}, s{sTMP} offen sc1", "  s_nop 0"][AMODE],
                 "  s_mov_b64 exec, -1"]
            if DCOMP: R += [f"  s_add_i32 s{sD}, s{sD}, {64*DCOMP}"]
            R += ["  s_branch L_sel"]
            rare.extend(pad(R))
            R = ["L_proc:", f"  v_readfirstlane_b32 s{sTMP}, v{VPG}", f"  v_readfirstlane_b32 s{sBASE}, v59",
                 f"  s_min_u32 s{sTMP}, s{sTMP}, {GN-1}", f"  s_lshl_b32 s{sTMP}, s{sTMP}, 1", f"  s_sub_i32 s{sTMP}, s{sTMP}, {GN-1}",
                 f"  s_mul_i32 s{sTMP2}, s{sTMP}, {KI}", f"  s_add_i32 s{sBASE}, s{sBASE}, s{sTMP2}",
                 f"  s_max_i32 s{sBASE}, s{sBASE}, {round(ILO*64)}", f"  s_min_i32 s{sBASE}, s{sBASE}, {round(IHI*64)}",
                 f"  s_mul_i32 s{sTMP}, s{sTMP}, {KP}", f"  s_add_i32 s{sD}, s{sTMP}, s{sBASE}",
                 f"  v_mov_b32 v60, s{sD}", f"  v_mov_b32 v61, s{sBASE}", f"  ds_write_b64 v{VZ}, v[60:61] offset:{FL+8}", "  s_branch L_sel"]
            rare.extend(pad(R))
        for i in range(1, len(vers)):
            body += [f"  s_cmp_eq_u32 s{sD}, {i}", f"  s_cbranch_scc1 L_v{i}"]
        for i, d in enumerate(vers):
            assert d <= D
            ren = lambda s: re.sub(r"(L_r[sb]\d+)", lambda m: m.group(1) + f"_{i}", s)
            body.append(f"L_v{i}:")
            c = 0
            for ln in core:
                if ln == f"  s_waitcnt vmcnt({D-1})":
                    dd = math.floor(d) if c % 2 == 0 else math.ceil(d); c += 1
                    ln = f"  s_waitcnt vmcnt({dd-1})"
                body.append(ren(ln))
            assert c == 12
            body += [f"  s_cmp_lt_u32 s{sIDX}, {k0 + niter}", "  s_cbranch_scc1 L_disp"]
            if i < len(vers) - 1: body.append("  s_branch L_tail")
            rare.extend(ren(x) for x in rb)
        body.append("L_tail:")
    ki += 12*niter
    while ki < 768:
        wait(D - 1); issue(kv[ki]); ki += 1; drain()
    for n in range(D - 1, -1, -1):
        wait(n); drain()
    assert cptr[0] == len(S)
    stamp(4)
    A(f"  v_add_f32_dpp v{VLS}, v{VLS}, v{VLS} row_ror:8 row_mask:0xf bank_mask:0xf")
    A(f"  v_lshlrev_b32 v57, 8, v3"); A(f"  v_add_u32 v57, v56, v57")
    A(f"  v_lshl_add_u32 v58, v9, 1, v56")
    A(f"  v_lshrrev_b32 v59, 1, v0"); A(f"  s_lshl_b32 s{sTMP}, s{sW}, 5"); A(f"  v_add_u32 v59, s{sTMP}, v59")
    A(f"  v_mov_b32 v60, v{VNML}"); A(f"  v_mov_b32 v61, v{VLS}")
    A("  s_mov_b32 exec_lo, 0x00ff00ff"); A("  s_mov_b32 exec_hi, 0xff00ff00")
    A(f"  ds_write_b128 v57, {v4(ACC)} offset:{OP}"); A(f"  ds_write_b128 v57, {v4(ACC+4)} offset:{OP+256}"); A(f"  ds_write_b128 v58, {v4(ACC+8)} offset:{OP}")
    A("  s_mov_b32 exec_lo, 0x00010001"); A("  s_mov_b32 exec_hi, 0x00010001")
    A(f"  ds_write_b64 v59, v[60:61] offset:{ML}")
    A("  s_mov_b64 exec, -1")
    A(f"  v_mov_b32 v57, 0")
    A(f"  s_mul_i32 s{sTMP}, s{sW}, 192"); A(f"  v_lshlrev_b32 v58, 2, v0"); A(f"  v_add_u32 v58, s{sTMP}, v58")
    A("  s_waitcnt lgkmcnt(0)"); A("  s_barrier")
    stamp(1, 1)
    E = 112
    for k in range(8): A(f"  ds_read_b128 {v4(E+4*k)}, v57 offset:{ML+16*k}")
    for p in range(8): A(f"  ds_read_b32 v{E+32+p}, v58 offset:{OP+768*p}")
    OA = 64
    for r in range(20): A(f"  v_mov_b32 v{OA+r}, 0")
    A("  s_waitcnt lgkmcnt(0)" if stamps else "  s_waitcnt lgkmcnt(8)")
    A(f"  v_min_f32 v{VTMP}, v{E}, v{E+8}"); A(f"  v_min3_f32 v{VTMP}, v{E+16}, v{E+24}, v{VTMP}")
    for w in range(4):
        A(f"  v_sub_f32 v{E+8*w}, v{VTMP}, v{E+8*w}"); A(f"  v_exp_f32 v{E+8*w}, v{E+8*w}")
        A(f"  v_add_f32 v{E+8*w+1}, v{E+8*w+1}, v{E+8*w+3}"); A(f"  v_add_f32 v{E+8*w+5}, v{E+8*w+5}, v{E+8*w+7}"); A(f"  v_add_f32 v{E+8*w+1}, v{E+8*w+1}, v{E+8*w+5}")
    A(f"  v_mul_f32 v{VP}, v{E}, v{E+1}")
    for w in range(1, 4): A(f"  v_fma_f32 v{VP}, v{E+8*w}, v{E+8*w+1}, v{VP}")
    A(f"  v_rcp_f32 v{VP}, v{VP}")
    A("  s_waitcnt lgkmcnt(0)")
    for w in range(4): A(f"  v_add_f32 v{E+32+2*w}, v{E+32+2*w}, v{E+33+2*w}")
    A(f"  v_mul_f32 v{VS}, v{E}, v{E+32}")
    for w in range(1, 4): A(f"  v_fma_f32 v{VS}, v{E+8*w}, v{E+32+2*w}, v{VS}")
    A(f"  v_mul_f32 v{VS}, v{VS}, v{VP}")
    A(f"  v_cvt_pk_bf16_f32 v{VS}, v{VS}, v{VS}")
    A(f"  s_lshl_b32 s{sTMP}, s{sW}, 7"); A(f"  v_lshlrev_b32 v58, 1, v0"); A(f"  v_add_u32 v58, s{sTMP}, v58")
    A(f"  ds_write_b16 v58, v{VS} offset:{OB}")
    A(f"  v_mul_u32_u24 v59, 24, v4"); A(f"  v_add_u32 v59, s{sTMP}, v59")
    A("  s_waitcnt lgkmcnt(0)")
    for k in range(3): A(f"  ds_read_b64 v[{Q+2*k}:{Q+2*k+1}], v59 offset:{OB+8*k}")
    A(f"  v_lshlrev_b32 v57, 1, v1"); A(f"  v_bfe_u32 v58, v0, 4, 1"); A(f"  v_lshl_add_u32 v57, v58, 4, v57"); A(f"  v_lshl_add_u32 v57, v3, 8, v57")
    A(f"  s_mul_i32 s{sTMP}, s{sW}, 2560"); A(f"  v_add_u32 v57, s{sTMP}, v57")
    A("  s_waitcnt lgkmcnt(0)")
    stamp(2, 1)
    for rb in range(12):
        sel = SEL if rb % 2 == 0 else ACC
        A(f"  v_perm_b32 v{VP}, v{Q + rb//2}, v{Q + rb//2}, s{sPHI if rb % 2 else sPLO}")
        for k in range(4): A(f"  v_and_b32 v{sel+k}, v{VP}, v{MK+k}")
        for tp in range(5):
            A(f"  v_mfma_f32_16x16x32_bf16 {v4(OA+4*tp)}, {v4(sel)}, {v4(wo_reg(rb*5+tp),'a')}, {v4(OA+4*tp)}")
    A("  s_mov_b32 exec_hi, 0")
    for tp in range(5): A(f"  ds_write_b128 v57, {v4(OA+4*tp)} offset:{FP+512*tp}")
    A("  s_mov_b64 exec, -1")
    A(f"  s_lshl_b32 s{sTMP}, s{sW}, 10"); A(f"  v_lshlrev_b32 v58, 4, v0"); A(f"  v_add_u32 v58, s{sTMP}, v58")
    A("  s_waitcnt lgkmcnt(0)"); A("  s_barrier")
    stamp(3, 1)
    A(f"  s_cmp_eq_u32 s{sW}, 3"); A("  s_cbranch_scc1 L_skipst")
    for w in range(4): A(f"  ds_read_b128 {v4(E+4*w)}, v58 offset:{FP+2560*w}")
    A(f"  s_mul_i32 s{sTMP}, s{sH}, 2560")
    A(f"  v_cmp_gt_u32 vcc, 2560, v58")
    A("  s_waitcnt lgkmcnt(0)")
    for r in range(4):
        A(f"  v_add_f32 v{E+r}, v{E+r}, v{E+4+r}"); A(f"  v_add_f32 v{E+8+r}, v{E+8+r}, v{E+12+r}"); A(f"  v_add_f32 v{E+r}, v{E+r}, v{E+8+r}")
    A("  s_mov_b64 exec, vcc")
    A(f"  buffer_store_dwordx4 {v4(E)}, v58, {srd(SWS)}, s{sTMP} offen sc1")
    A("  s_mov_b64 exec, -1")
    A("  s_waitcnt vmcnt(0)")
    A("L_skipst:")
    stamp(5)
    A("  s_barrier")
    A(f"  v_mov_b32 v59, 0")
    A(f"  s_cmp_lg_u32 s{sW}, 0"); A("  s_cbranch_scc1 L_skipat")
    A(f"  s_lshl_b32 s{sTMP}, s{sB}, 5")
    A("  v_mov_b32 v60, 1")
    A("  s_mov_b64 exec, 1")
    A(f"  buffer_atomic_add v60, v59, {srd(SDBG)}, s{sTMP} offen sc0 sc1")
    A("  s_waitcnt vmcnt(0)")
    A(f"  ds_write_b32 v59, v60 offset:{FL}")
    A("  s_mov_b64 exec, -1")
    A("  s_waitcnt lgkmcnt(0)")
    A("L_skipat:")
    A("  s_barrier")
    A(f"  ds_read_b32 v60, v59 offset:{FL}")
    A("  s_waitcnt lgkmcnt(0)")
    A(f"  v_readfirstlane_b32 s{sTMP}, v60")
    A(f"  s_cmp_lg_u32 s{sTMP}, 31"); A("  s_cbranch_scc1 L_fin")
    A(f"  v_lshlrev_b32 v57, 4, v0")
    A(f"  s_mul_i32 s{sTMP}, s{sW}, 20480")
    for k in range(20):
        if k and k % 4 == 0: A(f"  s_add_u32 s{sTMP}, s{sTMP}, 4096")
        o = (k % 4)*1024
        A(f"  buffer_load_dwordx4 {v4(E+4*k)}, v57, {srd(SWS)}, s{sTMP} offen" + (f" offset:{o}" if o else "") + " sc1")
    A(f"  s_mul_i32 s{sTMP}, s{sW}, 5120"); A(f"  v_add_u32 v57, s{sTMP}, v57")
    for k in range(5, 20):
        A(f"  s_waitcnt vmcnt({19-k})")
        for r in range(4): A(f"  v_add_f32 v{E+4*(k%5)+r}, v{E+4*(k%5)+r}, v{E+4*k+r}")
    for k in range(5): A(f"  ds_write_b128 v57, {v4(E+4*k)} offset:{RP+1024*k}")
    A("  s_waitcnt lgkmcnt(0)"); A("  s_barrier")
    A(f"  s_cmp_eq_u32 s{sW}, 3"); A("  s_cbranch_scc1 L_fin")
    for p in range(8): A(f"  ds_read_b128 {v4(E+4*p)}, v58 offset:{RP+2560*p}")
    A(f"  v_lshrrev_b32 v58, 1, v58")
    A("  s_waitcnt lgkmcnt(0)")
    for r in range(4):
        for p in range(1, 8): A(f"  v_add_f32 v{E+r}, v{E+r}, v{E+4*p+r}")
    A(f"  v_cvt_pk_bf16_f32 v{E}, v{E}, v{E+1}"); A(f"  v_cvt_pk_bf16_f32 v{E+1}, v{E+2}, v{E+3}")
    A(f"  buffer_store_dwordx2 v[{E}:{E+1}], v58, {srd(SOUT)}, 0 offen")
    A("  s_waitcnt vmcnt(0)")
    A("L_fin:")
    if stamps == 4:
        A("L_spin:"); stamp(6); A("  s_waitcnt lgkmcnt(0)"); A("  s_sub_u32 s92, s92, s80"); A("  s_cmp_lt_u32 s92, 16000"); A("  s_cbranch_scc1 L_spin")
    elif stamps == 3:
        stamp(6)
        A("  s_waitcnt lgkmcnt(0)")
        A(f"  s_cmp_lg_u32 s{sW}, 0"); A("  s_cbranch_scc1 L_end")
        A("  s_sub_u32 s2, s2, 128"); A("  s_cmp_ge_u32 s2, 8"); A("  s_cbranch_scc1 L_end")
        A("  s_sub_u32 s86, s86, s80"); A("  s_sub_u32 s88, s88, s80"); A("  s_mul_i32 s88, s88, 100000"); A("  s_add_u32 s88, s88, s86")
        A("  s_lshl_b32 s2, s2, 2")
        A("  v_mov_b32 v3, 0"); A("  s_mov_b64 exec, 1")
        A(f"  v_mov_b32 v4, s88"); A(f"  buffer_store_dword v4, v3, {srd(SDBG)}, s2 offen offset:32 sc1"); A("  s_waitcnt vmcnt(0)")
    elif stamps:
        stamp(6)
        A("  s_getreg_b32 s94, hwreg(HW_REG_XCC_ID)")
        A("  s_waitcnt lgkmcnt(0)")
        A(f"  s_lshl_b32 s{sTMP}, s2, 2"); A(f"  s_add_u32 s{sTMP}, s{sTMP}, s{sW}"); A(f"  s_lshl_b32 s{sTMP}, s{sTMP}, 5")
        A(f"  s_mov_b32 s{SWS}, s54"); A(f"  s_mov_b32 s{SWS+1}, s55"); A(f"  s_mov_b32 s{SWS+2}, 0x100000"); A(f"  s_mov_b32 s{SWS+3}, 0x20000")
        for k in range(8): A(f"  v_mov_b32 v{4+k}, s{80+2*k}")
        A("  v_mov_b32 v3, 0")
        A("  s_mov_b64 exec, 1"); A(f"  buffer_store_dwordx4 v[4:7], v3, {srd(SWS)}, s{sTMP} offen"); A(f"  buffer_store_dwordx4 v[8:11], v3, {srd(SWS)}, s{sTMP} offen offset:16"); A("  s_waitcnt vmcnt(0)")
    A("L_end:"); A("  s_endpgm")
    post = L
    allp = pad(pre + body + post)
    if not vers:
        i0 = allp.index("L_loop:"); i1 = allp.index("  s_cbranch_scc1 L_loop")
        check_loop(allp[i0:i1+1])
    T = [HDR.rstrip("\n"), f"; @launch grid=(256,1,1) block=(256,1,1) lds={LDS}",
         '.amdgcn_target "amdgcn-amd-amdhsa--gfx950"', ".text", f".globl {NAME}", ".p2align 8", f".type {NAME},@function", f"{NAME}:"]
    T += allp + rare
    T += ['.section .rodata,"a"', ".p2align 6", f".amdhsa_kernel {NAME}", "  .amdhsa_next_free_vgpr 512", "  .amdhsa_next_free_sgpr 102",
          "  .amdhsa_accum_offset 256", "  .amdhsa_group_segment_fixed_size 0", "  .amdhsa_kernarg_size 64", "  .amdhsa_user_sgpr_count 2",
          "  .amdhsa_user_sgpr_kernarg_segment_ptr 1", "  .amdhsa_system_sgpr_workgroup_id_x 1", ".end_amdhsa_kernel"]
    open(fn, "w").write("\n".join(T) + "\n")
    return fn
if __name__ == "__main__":
    from build import build
    if len(sys.argv) > 1 and sys.argv[1].endswith(".py"):
        os.makedirs("k", exist_ok=True)
        cfgs = eval(open(sys.argv[1]).read())
        outs = []
        for n, kw in cfgs.items():
            gen(f"k/{n}.s", **kw); build(f"k/{n}.s", quiet=True); outs.append(f"k/{n}.co")
        print(" ".join(outs))
    else:
        fn = "standalone__gqa_block_cached__decode.s"
        gen(fn); build(fn, "main.co")
```

```python
import sys, os, re, math, struct
from hz import pad, check_loop
NAME = "standalone__gqa_block_cached__decode_kernel"
HDR = open("standalone__gqa_block_cached__decode.s.ref").read().split("; Override launch")[0]
def f2u(f): return struct.unpack("<I", struct.pack("<f", f))[0]
LOG2E = 1.4426950408889634
SCALE = 192 ** -0.5
def mulshift(div, maxv):
    for sh in range(4, 24):
        m = (1 << sh) // div + 1
        if m * maxv < (1 << 24) * 256 and m < (1 << 24) and all(((v * m) >> sh) == v // div for v in range(maxv + 1)):
            if m * maxv < (1 << 32): return m, sh
    raise Exception("no mulshift")
QB = 0
OP = 1536
ML = OP + 6144
OB = ML + 128
FP = OB + 512
FL = FP + 10240
RP = FL + 288
PP = RP + 20480
LDS = PP + 24576
WS_PART = 0x100000; WS_TICK = 0x200000; WS_QX = 0xC00000; WS_CNT = 0xE00000
TKA = [46,39,32,26,20,16,12,9,7,5,3]

def gen(fn, D=8, DA=8, DT=8, R1=63, R2=3, stamps=False, kvflags="nt", wo_per_step=3, NBIG=10, wflags="nt", SS=0,
        vers=(4.5,5,5.5,6,6.5,7,8), GN=8, KP=16, KI=2, BASE=3.0, ILO=1.0, IHI=6.0, LST=4352, PB=0.7, KW=16, TK=TKA,
        F0=6, POLL=36, CS=4352, BR=2, NSPIN=64, FORCEFB=False, WO0=None, WE=2, WR=2, PW=0, CW=1, PD=2, QD=3, BURST=0, DBG=''):
    L = []; A = L.append
    rare = []
    VA0, VA2, VL0, VL2, VT = 10, 11, 12, 13, 14
    MK = 16; Q = 20; ACC = 32; SEL = 44
    VS, VTMP, VM, VNML, VLS, VP, VWQ, VWO = 48, 49, 50, 51, 52, 53, 54, 55
    RK, RV, BK = 64, 88, 112
    VPL, VPS, VPG, VZ = 15, 62, 63, 5
    VB0, VPO = 60, 61
    QA = 64
    TQ = [232, 236, 240, 244, 248, 252, ACC, ACC + 4]
    SK, SV, SWQ, SWO, SX, SWS, SOUT, SDBG = 8, 12, 16, 20, 24, 28, 32, 36
    SPG = 96; SQX = 4; SCN = 92 if not stamps else None
    sW, sB, sH, sBH, sOFF, sT, sIDX, sL0, sL1, sLOG, sSC, sPLO, sPHI, sTMP, sTMP2, sWOFF, sHI16 = 56, 57, 58, 59, 60, 61, 62, 63, 64, 65, 66, 67, 68, 69, 70, 71, 72
    sD = 73; sFB = 78; sBASE = 79; sCO = 3; sQO = 95
    def srd(n): return f"s[{n}:{n+3}]"
    def v4(n, p="v"): return f"{p}[{n}:{n+3}]"
    def v16(n): return f"v[{n}:{n+15}]"
    def stamp(k, ss=0):
        if SS and ss == 0 and k in (1, 2, 3): return
        if ss and ss != SS: return
        if stamps: A(f"  s_memrealtime s[{80+2*k}:{81+2*k}]")

    A(f"  s_cmp_ge_u32 s2, 256"); A("  s_cbranch_scc1 L_end")
    A("  s_load_dwordx16 s[40:55], s[0:1], 0")
    stamp(0)
    A("  v_lshrrev_b32 v1, 6, v0"); A(f"  v_readfirstlane_b32 s{sW}, v1")
    A("  v_and_b32 v0, 63, v0")
    A(f"  s_and_b32 s{sH}, s2, 7"); A(f"  s_lshl_b32 s{sH}, s{sH}, 2"); A(f"  s_bfe_u32 s{sTMP}, s2, {3 | (2 << 16)}"); A(f"  s_add_u32 s{sH}, s{sH}, s{sTMP}")
    A(f"  s_lshr_b32 s{sB}, s2, 5")
    A(f"  s_lshl_b32 s{sBH}, s{sB}, 5"); A(f"  s_add_u32 s{sBH}, s{sBH}, s{sH}")
    A("  v_and_b32 v1, 7, v0"); A("  v_lshlrev_b32 v1, 4, v1"); A("  v_lshrrev_b32 v2, 3, v0"); A("  v_and_b32 v3, 1, v2"); A("  v_lshrrev_b32 v4, 4, v0")
    A("  v_lshrrev_b32 v7, 5, v0"); A("  v_and_b32 v6, 3, v2"); A("  v_mul_u32_u24 v6, 1280, v6"); A("  v_mul_u32_u24 v56, 20, v7"); A("  v_add_u32 v56, v56, v6")
    A(f"  v_mul_u32_u24 v{VWQ}, {10*12288}, v7"); A("  v_and_b32 v6, 31, v0"); A(f"  v_lshl_add_u32 v{VWQ}, v6, 4, v{VWQ}")
    A(f"  v_mov_b32 v{VZ}, 0")
    A("  v_add_u32 v6, 1, v2"); A("  v_mul_u32_u24 v6, 11, v6"); A("  v_lshrrev_b32 v6, 5, v6"); A("  v_mul_u32_u24 v6, 84, v6")
    A("  v_mul_u32_u24 v7, 85, v2"); A("  v_add_u32 v7, 84, v7"); A("  v_sub_u32 v7, v7, v6"); A("  v_mul_u32_u24 v7, 384, v7"); A("  v_add_u32 v7, v7, v1")
    A("  v_lshlrev_b32 v8, 7, v3")
    A("  v_lshlrev_b32 v9, 8, v3"); A("  v_sub_u32 v9, 256, v9")
    A(f"  v_add_u32 v{VL0}, v7, v8"); A(f"  v_add_u32 v{VL2}, v7, v9")
    A(f"  s_mul_i32 s{sL0}, s{sW}, {2*196608}"); A(f"  s_add_u32 s{sL1}, s{sL0}, 196608")
    A(f"  s_lshl_b32 s{sT}, s{sB}, 2"); A(f"  s_add_u32 s{sT}, s{sT}, s{sW}")
    A(f"  s_mul_i32 s{sTMP}, s{sT}, 40")
    A(f"  s_mul_i32 s{sTMP2}, s{sT}, {20*12288}"); A(f"  s_mul_i32 s{sOFF}, s{sH}, 384"); A(f"  s_add_u32 s{sTMP2}, s{sTMP2}, s{sOFF}")
    A(f"  s_mul_i32 s{sOFF}, s{sBH}, 1572864")
    A(f"  s_mov_b32 s{sWOFF}, 5120")
    A(f"  s_lshl_b32 s{sCO}, s{sH}, 3"); A(f"  s_add_u32 s{sCO}, s{sCO}, s{sB}"); A(f"  s_mul_i32 s{sCO}, s{sCO}, {CS}"); A(f"  s_add_u32 s{sCO}, s{sCO}, {WS_CNT - WS_QX}")
    A(f"  s_mov_b32 s{SX+3}, 0x20000"); A(f"  s_mov_b32 s{SWQ+3}, 0x20000"); A(f"  s_mov_b32 s{SQX+3}, 0x20000"); A(f"  s_mov_b32 s{SK+3}, 0x20000"); A(f"  s_mov_b32 s{SV+3}, 0x20000")
    A(f"  s_sub_u32 s{SX+2}, 10240, s{sTMP}"); A(f"  s_mov_b32 s{SWQ+2}, {19*12288+384}"); A(f"  s_mov_b32 s{SQX+2}, {WS_CNT - WS_QX + 256*CS}")
    A(f"  s_mov_b32 s{SK+2}, 1572864"); A(f"  s_mov_b32 s{SV+2}, 1572864")
    A(f"  s_cmp_eq_u32 s{sW}, {CW}"); A(f"  s_cselect_b32 s76, -1, 0"); A(f"  s_cselect_b32 s77, 0xffff, 0")
    A("  s_waitcnt lgkmcnt(0)")
    A(f"  s_add_u32 s{SX}, s40, s{sTMP}"); A(f"  s_addc_u32 s{SX+1}, s41, 0")
    A(f"  s_add_u32 s{SWQ}, s46, s{sTMP2}"); A(f"  s_addc_u32 s{SWQ+1}, s47, 0")
    A(f"  s_add_u32 s{SQX}, s54, {WS_QX}"); A(f"  s_addc_u32 s{SQX+1}, s55, 0")
    A(f"  s_add_u32 s{SK}, s42, s{sOFF}"); A(f"  s_addc_u32 s{SK+1}, s43, 0")
    A(f"  s_add_u32 s{SV}, s44, s{sOFF}"); A(f"  s_addc_u32 s{SV+1}, s45, 0")

    def setup2():
        A(f"  s_mul_i32 s{sTMP}, s{sH}, {192*1280}"); A(f"  s_mul_i32 s{sTMP2}, s{sW}, {48*1280}"); A(f"  s_add_u32 s{sTMP}, s{sTMP}, s{sTMP2}")
        A(f"  s_add_u32 s{SWO}, s48, s{sTMP}"); A(f"  s_addc_u32 s{SWO+1}, s49, 0"); A(f"  s_mov_b32 s{SWO+2}, {48*1280}"); A(f"  s_mov_b32 s{SWO+3}, 0x20000")
        A(f"  s_mul_i32 s{sTMP}, s{sB}, {32*2560}"); A(f"  s_add_u32 s{sTMP}, s{sTMP}, {WS_PART}")
        A(f"  s_add_u32 s{SWS}, s54, s{sTMP}"); A(f"  s_addc_u32 s{SWS+1}, s55, 0"); A(f"  s_mov_b32 s{SWS+2}, {32*2560}"); A(f"  s_mov_b32 s{SWS+3}, 0x20000")
        A(f"  s_mul_i32 s{sTMP}, s{sB}, 1280")
        A(f"  s_add_u32 s{SOUT}, s50, s{sTMP}"); A(f"  s_addc_u32 s{SOUT+1}, s51, 0"); A(f"  s_mov_b32 s{SOUT+2}, 1280"); A(f"  s_mov_b32 s{SOUT+3}, 0x20000")
        A(f"  s_mov_b32 s{SDBG}, s52"); A(f"  s_mov_b32 s{SDBG+1}, s53"); A(f"  s_mov_b32 s{SDBG+2}, 256"); A(f"  s_mov_b32 s{SDBG+3}, 0x20000")
        A(f"  s_mov_b32 s{sLOG}, {hex(f2u(LOG2E))}"); A(f"  s_mov_b32 s{sSC}, {hex(f2u(SCALE))}")
        A(f"  s_mov_b32 s{sPLO}, 0x01000100"); A(f"  s_mov_b32 s{sPHI}, 0x03020302"); A(f"  s_mov_b32 s{sHI16}, 0xffff0000")
        A(f"  s_mov_b32 s{sFB}, 0")
        if stamps: A(f"  s_mov_b32 s{sBH}, 0")
        A("  v_mul_u32_u24 v6, 384, v4"); A(f"  v_mul_u32_u24 v7, {85*384}, v3"); A("  v_add_u32 v6, v6, v7"); A("  v_add_u32 v6, v6, v1")
        A(f"  v_add_u32 v{VA0}, v6, v8"); A(f"  v_add_u32 v{VA2}, v6, v9")
        A(f"  v_mul_u32_u24 v{VWO}, {12*1280}, v4"); A(f"  v_add_u32 v{VWO}, v{VWO}, v8"); A(f"  v_add_u32 v{VWO}, v{VWO}, v1")
        A("  v_and_b32 v6, 1, v0"); A("  v_lshlrev_b32 v6, 4, v6"); A("  v_mov_b32 v7, 0xffff"); A("  v_lshlrev_b32 v7, v6, v7")
        A("  v_bfe_u32 v6, v0, 1, 2")
        for k in range(4):
            A(f"  v_cmp_eq_u32 vcc, {k}, v6"); A(f"  v_cndmask_b32 v{MK+k}, 0, v7, vcc")
        A(f"  s_bfe_u32 s{sTMP}, s2, {3 | (3 << 16)}"); A(f"  s_mul_i32 s{sTMP}, s{sTMP}, {R1}")
        A(f"  s_bfe_u32 s{sTMP2}, s2, {6 | (2 << 16)}"); A(f"  s_mul_i32 s{sTMP2}, s{sTMP2}, {R2}"); A(f"  s_add_u32 s{sTMP}, s{sTMP}, s{sTMP2}")
        A(f"  s_add_u32 s{sTMP}, s{sTMP}, s{sW}")
        assert 7*R1 + 3*R2 < 504
        m21, s21 = mulshift(21, 1100); m3, s3 = mulshift(3, 60)
        for half in range(2):
            A("  v_lshlrev_b32 v6, 1, v0")
            if half: A("  v_add_u32 v6, 1, v6")
            A("  v_lshlrev_b32 v6, 2, v6")
            A(f"  v_add_u32 v6, s{sTMP}, v6")
            A("  v_subrev_u32 v7, 504, v6"); A("  v_cmp_le_u32 vcc, 504, v6"); A("  v_cndmask_b32 v6, v6, v7, vcc")
            A(f"  v_mul_u32_u24 v7, {m21}, v6"); A(f"  v_lshrrev_b32 v7, {s21}, v7")
            A(f"  v_mul_u32_u24 v57, {m3}, v7"); A(f"  v_lshrrev_b32 v57, {s3}, v57")
            A("  v_mul_u32_u24 v7, 87, v7"); A("  v_sub_u32 v7, v7, v57"); A("  v_lshl_add_u32 v7, v6, 2, v7")
            if half == 0: A(f"  v_and_b32 v{VT}, 0xffff, v7")
            else: A(f"  v_lshl_or_b32 v{VT}, v7, 16, v{VT}")
        if vers:
            lg = GN.bit_length() - 1
            A(f"  s_lshr_b32 s101, s2, {lg}")
            A(f"  s_mul_i32 s{sTMP2}, s101, {64*LST + 256}")
            A(f"  s_add_u32 s{SPG}, s54, {WS_TICK}"); A(f"  s_addc_u32 s{SPG+1}, s55, 0"); A(f"  s_mov_b32 s{SPG+2}, {(256//GN)*(64*LST+256)}"); A(f"  s_mov_b32 s{SPG+3}, 0x20000")
            A(f"  s_getreg_b32 s{sBASE}, hwreg(HW_REG_XCC_ID)"); A(f"  s_and_b32 s{sBASE}, s{sBASE}, 1")
            A(f"  s_mul_i32 s{sBASE}, s{sBASE}, {round(2*PB*64)}"); A(f"  s_add_u32 s{sBASE}, s{sBASE}, {round((BASE+0.5-PB)*64)}")
            A(f"  v_mov_b32 v58, s{sBASE}"); A(f"  v_mov_b32 v59, s{sBASE}"); A(f"  ds_write_b64 v{VZ}, v[58:59] offset:{FL+8}")
            A(f"  ds_write_b32 v{VZ}, v{VZ} offset:{FL+16}")
            A(f"  s_lshl_b32 s{sTMP}, s2, 2"); A(f"  s_add_u32 s{sTMP}, s{sTMP}, s{sW}")
            A(f"  v_xor_b32 v6, s{sTMP}, v0"); A(f"  v_and_b32 v6, {min(4*GN,64)-1}, v6"); A(f"  v_cmp_eq_u32 vcc, 0, v6")
            A(f"  v_mul_u32_u24 v6, {LST}, v0")
            A(f"  s_mov_b64 exec, vcc")
            if 'z' not in DBG: A(f"  buffer_store_dword v{VZ}, v6, {srd(SPG)}, s{sTMP2} offen sc1")
            A(f"  s_mov_b64 exec, -1")
            A(f"  s_and_b32 s100, s2, {GN-1}")
        A(f"  v_mov_b32 v{VM}, 0xff800000"); A(f"  v_mov_b32 v{VNML}, 0x7f800000"); A(f"  v_mov_b32 v{VLS}, 0")

    class Ld: pass
    def mk(kind, step, t, dstp, dst, text, pre=(), post=()):
        l = Ld(); l.kind, l.step, l.t, l.dstp, l.dst, l.text, l.pre, l.post = kind, step, t, dstp, dst, text, list(pre), list(post); l.done = False; return l
    def kv_load(n, isv, t, loop=False):
        if n < NBIG: p, d = ("a", 12*n + 4*t) if isv else ("v", BK + 12*n + 4*t)
        else: p, d = "v", (RV if isv else RK) + 12*(n % 2) + 4*t
        pre = []
        if n < 2:
            so = f"s{sL0 + n}"; va = VL2 if t == 2 else VL0
        else:
            so = f"s{sOFF}"; va = VA2 if t == 2 else VA0
            if not isv and t == 0:
                if n % 2 == 0: pre += [f"  s_and_b32 s{sOFF}, s{sT}, 0xffff", f"  s_mul_i32 s{sOFF}, s{sOFF}, 384"]
                else: pre += [f"  s_lshr_b32 s{sOFF}, s{sT}, 16", f"  s_mul_i32 s{sOFF}, s{sOFF}, 384"]
        if n % 2 == 1 and not isv and t == 1 and n + 1 < 128:
            k = (n + 1 - 2) // 2
            if loop: pre += [f"  v_readlane_b32 s{sT}, v{VT}, s{sIDX}", f"  s_add_u32 s{sIDX}, s{sIDX}, 1"]
            else: pre += [f"  v_readlane_b32 s{sT}, v{VT}, {k}"]
        off = f" offset:128" if t == 1 else ""
        txt = f"  buffer_load_dwordx4 {v4(d,p)}, v{va}, {srd(SV if isv else SK)}, {so} offen{off} {kvflags}"
        return mk("v" if isv else "k", n, t, p, d, txt, pre)
    def kv_step(n, loop=False): return [kv_load(n, isv, t, loop) for isv in (0, 1) for t in range(3)]
    def wq_load(i):
        d = 120 + 4*i
        pre = [f"  s_mov_b32 s{sWOFF}, {i*12288}"] if i else []
        so = f"s{sWOFF}" if i else "0"
        return mk("wq", i, 0, "a", d, f"  buffer_load_dwordx4 {v4(d,'a')}, v{VWQ}, {srd(SWQ)}, {so} offen {wflags}", pre)
    def wo_reg(i): return (120 + 4*((i + 10) % 30)) if i < 30 else 4*(i - 30)
    def wo_load(i):
        rb, tp = divmod(i, 5); d = wo_reg(i)
        pre = [f"  s_mov_b32 s{sWOFF}, {(rb//3)*3840}"] if i % 15 == 0 else []
        o = (rb % 3)*1280 + 256*tp
        off = f" offset:{o}" if o else ""
        return mk("wo", rb, tp, "a", d, f"  buffer_load_dwordx4 {v4(d,'a')}, v{VWO}, {srd(SWO)}, s{sWOFF} offen{off} {wflags}", pre)
    def selector(src, sel=SEL):
        for k in range(4): A(f"  v_and_b32 v{sel+k}, v{src}, v{MK+k}")
    uid = [0]
    def xreg(s, i): return (Q + 4*s + i//2) if i < 8 else (Q + 8 + s)
    def consume(l):
        l.done = True
        if l.kind == "wq":
            for s in range(2):
                sel = SEL if s == 0 else ACC + 8
                A(f"  v_perm_b32 v{VP}, v{xreg(s, l.step)}, v{xreg(s, l.step)}, s{sPHI if l.step % 2 else sPLO}")
                selector(VP, sel)
                c = "0" if l.step == 0 else v16(QA + 16*s)
                A(f"  v_mfma_f32_32x32x16_bf16 {v16(QA+16*s)}, {v4(sel)}, {v4(l.dst,l.dstp)}, {c}")
        elif l.kind == "k":
            for r in range(4):
                c = "0" if (l.t == 0 and r == 0) else f"v{VS}"
                A(f"  v_dot2_f32_bf16 v{VS}, v{l.dst+r}, v{Q+4*l.t+r}, {c}")
            if l.t == 2:
                A(f"  v_add_f32_dpp v{VS}, v{VS}, v{VS} quad_perm:[1,0,3,2] row_mask:0xf bank_mask:0xf")
                A(f"  v_add_f32_dpp v{VS}, v{VS}, v{VS} quad_perm:[2,3,0,1] row_mask:0xf bank_mask:0xf")
                A(f"  v_add_f32_dpp v{VS}, v{VS}, v{VS} row_half_mirror row_mask:0xf bank_mask:0xf")
                A(f"  v_cvt_pk_bf16_f32 v{VS}, v{VS}, v{VS}"); A(f"  v_and_b32 v{VS}, s{sHI16}, v{VS}")
                A(f"  v_mul_f32 v{VS}, s{sSC}, v{VS}")
                A(f"  v_cvt_pk_bf16_f32 v{VS}, v{VS}, v{VS}"); A(f"  v_and_b32 v{VS}, s{sHI16}, v{VS}")
                u = uid[0]; uid[0] += 1
                A(f"  v_cmp_gt_f32 vcc, v{VS}, v{VM}"); A(f"  s_cbranch_vccnz L_rs{u}"); A(f"L_rb{u}:")
                A(f"  v_fma_f32 v{VP}, v{VS}, s{sLOG}, v{VNML}"); A(f"  v_exp_f32 v{VP}, v{VP}")
                A(f"  v_cvt_pk_bf16_f32 v{VTMP}, v{VP}, v{VP}"); A(f"  v_add_f32 v{VLS}, v{VLS}, v{VP}")
                selector(VTMP)
                R = [f"L_rs{u}:", "  s_nop 7",
                     f"  v_max_f32_dpp v{VTMP}, v{VS}, v{VS} row_ror:8 row_mask:0xf bank_mask:0xf",
                     f"  v_readlane_b32 s74, v{VTMP}, 0", f"  v_readlane_b32 s75, v{VTMP}, 16", f"  v_readlane_b32 s76, v{VTMP}, 32", f"  v_readlane_b32 s77, v{VTMP}, 48",
                     f"  v_max_f32 v{VM}, s74, v{VM}", f"  v_max_f32 v{VM}, s75, v{VM}", f"  v_max_f32 v{VM}, s76, v{VM}", f"  v_max_f32 v{VM}, s77, v{VM}",
                     f"  v_mul_f32 v{VTMP}, s{sLOG}, v{VM}", f"  v_sub_f32 v{VP}, 0, v{VNML}",
                     f"  v_sub_f32 v{VP}, v{VP}, v{VTMP}", f"  v_exp_f32 v{VP}, v{VP}",
                     f"  v_sub_f32 v{VNML}, 0, v{VTMP}", f"  v_mul_f32 v{VLS}, v{VLS}, v{VP}"]
                R += [f"  v_mul_f32 v{ACC+r}, v{ACC+r}, v{VP}" for r in range(12)]
                R += [f"  s_branch L_rb{u}"]
                rare.extend(pad(R))
        elif l.kind == "v":
            A(f"  v_mfma_f32_16x16x32_bf16 {v4(ACC+4*l.t)}, {v4(SEL)}, {v4(l.dst,l.dstp)}, {v4(ACC+4*l.t)}")

    S = []; st = dict(comp=-1, mid=False, credit=0); owner = {}
    def wait(n):
        c = len(S) - 1 - n
        if c > st["comp"]:
            A(f"  s_waitcnt vmcnt({n})"); st["comp"] = c
    def issue(l):
        key = (l.dstp, l.dst)
        if key in owner: assert owner[key].done, (l.kind, l.step, l.t, owner[key].kind, owner[key].step)
        owner[key] = l
        for p in l.pre: A(p)
        A(l.text); l.pos = len(S); S.append(l)
        for p in l.post: A(p)
    cptr = [0]; qready = [False]; backlog = []; wqq = []
    def try_backlog():
        while backlog and qready[0] and not st["mid"] and st["credit"] >= 6 and hasattr(backlog[0][-1], "pos") and backlog[0][-1].pos <= st["comp"]:
            for x in backlog.pop(0): consume(x)
            st["credit"] -= 6
    def drain():
        if qready[0]: st["credit"] += BR
        while cptr[0] <= st["comp"]:
            l = S[cptr[0]]
            if l.kind in ("k", "v"):
                if l.step < NBIG: pass
                elif not qready[0]: break
                else:
                    consume(l); st["mid"] = not (l.kind == "v" and l.t == 2)
                    try_backlog()
            elif l.kind == "wq": wqq.append(l)
            elif l.kind == "x": l.done = True
            cptr[0] += 1
        try_backlog()

    kv = []
    for n in range(128): kv += kv_step(n)
    for n in range(NBIG): backlog.append(kv[6*n:6*n+6])
    K = dict(i=0, wi=0, cnt=0, wo=False)
    def pump(d):
        if not qready[0]: assert K["i"] < 6*NBIG + 12
        wait(d - 1); issue(kv[K["i"]]); K["i"] += 1; drain()
        if K["wo"]:
            K["cnt"] += 1
            while K["wi"] < 60 and K["wi"] < K["cnt"]*wo_per_step//6:
                l = wo_load(K["wi"]); key = (l.dstp, l.dst)
                if K["wi"] >= 30 and key not in owner: break
                if key in owner and not owner[key].done: break
                wait(d - 1); issue(l); l.done = True; K["wi"] += 1; drain()
    issue(mk("x", 0, 0, "v", Q, f"  buffer_load_dwordx4 {v4(Q)}, v56, {srd(SX)}, 0 offen"))
    issue(mk("x", 0, 0, "v", Q+8, f"  buffer_load_dword v{Q+8}, v56, {srd(SX)}, 0 offen offset:16"))
    issue(mk("x", 0, 0, "v", Q+4, f"  buffer_load_dwordx4 {v4(Q+4)}, v56, {srd(SX)}, s{sWOFF} offen"))
    issue(mk("x", 0, 0, "v", Q+9, f"  buffer_load_dword v{Q+9}, v56, {srd(SX)}, s{sWOFF} offen offset:16"))
    issue(mk("x", 0, 0, "v", VB0, f"  buffer_load_dword v{VB0}, v{VZ}, {srd(SQX)}, s{sCO} offen sc1", ["  s_mov_b64 exec, s[76:77]"]))
    A("  s_mov_b32 exec_lo, 0x00ffffff"); A("  s_mov_b32 exec_hi, 0x00ffffff")
    for i in range(10): issue(wq_load(i))
    A("  s_mov_b64 exec, -1")
    lastwq = len(S) - 1
    for i in range(F0): issue(kv[i])
    K["i"] = F0
    A(f"  ds_write_b32 v{VZ}, v{VZ} offset:{FL+4}"); A(f"  ds_write_b32 v{VZ}, v{VZ} offset:{FL+276}")
    setup2()
    A("  s_waitcnt lgkmcnt(0)"); A("  s_barrier")
    A(f"  v_and_b32 v56, 31, v0"); A(f"  v_lshlrev_b32 v56, 5, v56"); A(f"  v_lshrrev_b32 v57, 5, v0"); A(f"  v_lshl_add_u32 v56, v57, 4, v56")
    A(f"  s_mul_i32 s{sTMP}, s{sW}, 6144"); A(f"  v_add_u32 v56, s{sTMP}, v56")
    A(f"  v_lshlrev_b32 v58, 4, v0")
    n = len(S) - 1 - 5
    nc = 0
    while n >= DA and nc < WE:
        n -= 1; wait(n); drain()
        while wqq and nc < WE: consume(wqq.pop(0)); nc += 1
    while st["comp"] < lastwq or wqq:
        pump(DA)
        for _ in range(WR):
            if wqq: consume(wqq.pop(0))
    A("  s_mov_b32 exec_lo, 0x00ffffff"); A("  s_mov_b32 exec_hi, 0x00ffffff")
    for k in range(8): A(f"  ds_write_b128 v56, {v4(QA+4*k)} offset:{PP + 768*k}")
    A("  s_mov_b64 exec, 1"); A(f"  v_mov_b32 v59, 1")
    A("  s_waitcnt lgkmcnt(0)")
    A(f"  ds_add_u32 v{VZ}, v59 offset:{FL+4}")
    A("  s_mov_b64 exec, -1")
    for _ in range(PD): pump(DA)
    for i in range(BURST): pump(DA + i + 1)
    A(f"  s_mul_i32 s{sQO}, s{sH}, 49152")
    A(f"  s_cmp_lg_u32 s{sW}, {PW}"); A("  s_cbranch_scc1 L_nopub")
    A(f"  s_mul_i32 s{sTMP}, s{sB}, 6144"); A(f"  s_add_u32 s74, s{sTMP}, s{sQO}"); A(f"  s_add_u32 s75, s74, 4096")
    A(f"  v_mul_u32_u24 v57, {CS}, v0"); A(f"  s_mul_i32 s{sTMP}, s{sB}, {CS}"); A(f"  s_sub_u32 s{sTMP2}, s{sCO}, s{sTMP}")
    A("L_pw:"); A(f"  ds_read_b32 v59, v{VZ} offset:{FL+4}"); A("  s_waitcnt lgkmcnt(0)"); A(f"  v_readfirstlane_b32 s{sTMP}, v59")
    A(f"  s_cmp_lg_u32 s{sTMP}, 4"); A("  s_cbranch_scc1 L_pw")
    A(f"  v_mov_b32 v59, 1")
    for rd in range(3):
        for s in range(2):
            for p in range(4): A(f"  ds_read_b128 {v4(QA + 16*s + 4*p)}, v58 offset:{PP + 6144*p + 1024*(2*rd+s)}")
        for s in range(2):
            A(f"  s_waitcnt lgkmcnt({0 if (s or stamps) else 4})")
            b = QA + 16*s; k = 2*rd + s; d = 232 + 4*k
            for r in range(4):
                A(f"  v_add_f32 v{b+r}, v{b+r}, v{b+4+r}"); A(f"  v_add_f32 v{b+8+r}, v{b+8+r}, v{b+12+r}"); A(f"  v_add_f32 v{d+r}, v{b+r}, v{b+8+r}")
            o = 1024*(k % 4)
            if 's' not in DBG: A(f"  buffer_store_dwordx4 {v4(d)}, v58, {srd(SQX)}, s{74 + k//4} offen" + (f" offset:{o}" if o else "") + " sc1")
    if 'w' not in DBG: A("  s_waitcnt vmcnt(0)")
    A("  s_mov_b64 exec, 0xff")
    if 'a' not in DBG: A(f"  buffer_atomic_add v59, v57, {srd(SQX)}, s{sTMP2} offen sc1")
    A("  s_mov_b64 exec, -1")
    A("L_nopub:")
    stamp(1)
    if WO0 is not None:
        while K["i"] < WO0: pump(DA)
        K["wo"] = True
    while K["i"] < POLL: pump(DA)
    polltxt = f"  buffer_load_dword v{VPO}, v{VZ}, {srd(SQX)}, s{sCO} offen sc1"
    issue(mk("x", 0, 0, "v", VPO, polltxt, ["  s_mov_b64 exec, s[76:77]"], ["  s_mov_b64 exec, -1"])); p = len(S) - 1
    while st["comp"] < p: pump(DA)
    chk = [f"  v_sub_u32 v{VPO}, v{VPO}, v{VB0}", f"  v_readfirstlane_b32 s{sTMP}, v{VPO}", f"  s_cmp_eq_u32 s{sTMP}, {9 if FORCEFB else (0 if 'a' in DBG else 8)}"]
    A(f"  s_cmp_lg_u32 s{sW}, {CW}"); A("  s_cbranch_scc1 L_pok")
    for c in chk: A(c)
    A("  s_cbranch_scc0 L_spin"); A("L_pok:")
    FA, FD = 232, 248
    R = ["L_spin:", f"  s_mov_b32 s{sFB}, {NSPIN}", "L_spin1:", polltxt, "  s_waitcnt vmcnt(0)"] + chk + [
         "  s_cbranch_scc1 L_spin2", f"  s_sub_u32 s{sFB}, s{sFB}, 1", f"  s_cmp_lg_u32 s{sFB}, 0", "  s_cbranch_scc1 L_spin1",
         f"  s_mul_i32 s{sTMP}, s{sB}, 1280", f"  s_add_u32 s{SX}, s40, s{sTMP}", f"  s_addc_u32 s{SX+1}, s41, 0", f"  s_mov_b32 s{SX+2}, 1280",
         f"  s_mul_i32 s{sTMP}, s{sH}, 384", f"  s_add_u32 s{SWQ}, s46, s{sTMP}", f"  s_addc_u32 s{SWQ+1}, s47, 0", f"  s_mov_b32 s{SWQ+2}, {639*12288+384}",
         f"  v_lshrrev_b32 v252, 5, v0", f"  v_mul_u32_u24 v253, 640, v252", f"  v_mul_u32_u24 v252, {320*12288}, v252",
         f"  v_and_b32 v254, 31, v0", f"  v_min_u32 v254, 23, v254", f"  v_lshl_add_u32 v252, v254, 4, v252",
         f"  s_mov_b32 s{sTMP}, 0", f"  s_mov_b32 s{sTMP2}, 0"]
    R += [f"  v_mov_b32 v{FA+r}, 0" for r in range(16)]
    R += ["L_fb1:", f"  buffer_load_ushort v254, v253, {srd(SX)}, s{sTMP} offen", f"  buffer_load_dwordx4 {v4(FD)}, v252, {srd(SWQ)}, s{sTMP2} offen",
          "  s_waitcnt vmcnt(0)", f"  v_perm_b32 v{VP}, v254, v254, s{sPLO}"]
    R += [f"  v_and_b32 v{SEL+k}, v{VP}, v{MK+k}" for k in range(4)]
    R += [f"  v_mfma_f32_32x32x16_bf16 {v16(FA)}, {v4(SEL)}, {v4(FD)}, {v16(FA)}", "  s_nop 7", "  s_nop 7",
          f"  s_add_u32 s{sTMP}, s{sTMP}, 2", f"  s_add_u32 s{sTMP2}, s{sTMP2}, 12288", f"  s_cmp_lt_u32 s{sTMP}, 640", "  s_cbranch_scc1 L_fb1",
          f"  v_cvt_pk_bf16_f32 v{FD}, v{FA}, v{FA+1}", f"  v_cvt_pk_bf16_f32 v{FD+1}, v{FA+2}, v{FA+3}",
          f"  v_and_b32 v254, 31, v0", f"  v_lshlrev_b32 v254, 4, v254", f"  v_lshrrev_b32 v253, 5, v0", f"  v_lshl_add_u32 v254, v253, 3, v254",
          "  s_mov_b32 exec_lo, 0x00ffffff", "  s_mov_b32 exec_hi, 0x00ffffff",
          f"  ds_write_b64 v254, v[{FD}:{FD+1}] offset:{QB}", "  s_mov_b64 exec, -1", "  s_waitcnt lgkmcnt(0)",
          f"  s_mov_b32 s{sFB}, 1", "  s_branch L_pok",
          "L_spin2:"] + ([f"  s_sub_u32 s{sBH}, {NSPIN+1}, s{sFB}"] if stamps else []) + [f"  s_mov_b32 s{sFB}, 0", "  s_branch L_pok"]
    rare.extend(pad(R))
    A("  s_mov_b64 exec, s[76:77]" if 'l' not in DBG else "  s_mov_b64 exec, 0")
    for j in range(8):
        pre = [f"  s_add_u32 s74, s74, 6144"] if j else [f"  s_mul_i32 s74, s{sB}, 768", f"  s_add_u32 s74, s74, s{sQO}"]
        issue(mk("x", 0, 0, "v", TQ[j], f"  buffer_load_dwordx4 {v4(TQ[j])}, v58, {srd(SQX)}, s74 offen sc1", pre))
    A("  s_mov_b64 exec, -1")
    p = len(S) - 1
    A(f"  v_lshlrev_b32 v57, 3, v0")
    A(f"  v_add_u32 v60, v1, v8"); A(f"  v_add_u32 v61, v1, v9")
    for _ in range(DA - 1): pump(DA + 8)
    while st["comp"] < p: pump(DA)
    A(f"  s_cmp_lg_u32 s{sW}, {CW}"); A("  s_cbranch_scc1 L_qno")
    A(f"  s_cmp_lg_u32 s{sFB}, 0"); A("  s_cbranch_scc1 L_qfb")
    for r in range(4):
        for a, b in ((0, 1), (2, 3), (4, 5), (6, 7), (0, 2), (4, 6), (0, 4)):
            A(f"  v_add_f32 v{TQ[a]+r}, v{TQ[a]+r}, v{TQ[b]+r}")
    A(f"  v_cvt_pk_bf16_f32 v{TQ[0]}, v{TQ[0]}, v{TQ[0]+1}"); A(f"  v_cvt_pk_bf16_f32 v{TQ[0]+1}, v{TQ[0]+2}, v{TQ[0]+3}")
    A("  s_mov_b32 exec_hi, 0xffff")
    A(f"  ds_write_b64 v57, v[{TQ[0]}:{TQ[0]+1}] offset:{QB}")
    A("  s_mov_b64 exec, -1")
    A("L_qfb:")
    A(f"  v_mov_b32 v59, 1")
    A("  s_waitcnt lgkmcnt(0)")
    A(f"  ds_write_b32 v{VZ}, v59 offset:{FL+276}")
    A("L_qno:")
    for r in range(12): A(f"  v_mov_b32 v{ACC+r}, 0")
    for _ in range(QD): pump(DA)
    A("L_qw:"); A(f"  ds_read_b32 v59, v{VZ} offset:{FL+276}"); A("  s_waitcnt lgkmcnt(0)"); A(f"  v_readfirstlane_b32 s{sTMP}, v59")
    A(f"  s_cmp_eq_u32 s{sTMP}, 0"); A("  s_cbranch_scc1 L_qw")
    A(f"  ds_read_b128 {v4(Q)}, v60 offset:{QB}"); A(f"  ds_read_b128 {v4(Q+4)}, v60 offset:{QB+128}"); A(f"  ds_read_b128 {v4(Q+8)}, v61 offset:{QB}")
    A(f"  v_lshlrev_b32 v56, 1, v1"); A(f"  v_bfe_u32 v57, v0, 4, 1"); A(f"  v_lshl_add_u32 v56, v57, 4, v56")
    A(f"  v_mul_u32_u24 v57, 768, v3"); A(f"  v_add_u32 v56, v56, v57")
    A(f"  s_mul_i32 s{sTMP}, s{sW}, 1536"); A(f"  v_add_u32 v56, s{sTMP}, v56")
    pump(DA)
    A("  s_waitcnt lgkmcnt(0)")
    stamp(2)
    qpos = K["i"]
    qready[0] = True; K["wo"] = True
    st["credit"] = 6
    drain()
    while K["wi"] < 60: pump(DT)
    lastwo = len(S) - 1
    while True:
        pump(D)
        nxt = S[len(S) - D]
        if len(S) - D > lastwo and nxt.kind == "k" and nxt.t == 0 and nxt.step % 2 == 0 and not backlog and cptr[0] == len(S) - D: break
    ki = K["i"]
    n0 = nxt.step
    niter = (126 - n0)//2
    nread = [l for l in kv[ki:ki+12] if any("readlane" in p for p in l.pre)]
    assert len(nread) == 1
    k0 = (nread[0].step + 1 - 2)//2
    A(f"  s_mov_b32 s{sIDX}, {k0}")
    stamp(3)
    if vers:
        A(f"  v_mov_b32 v58, s{sBASE}"); A(f"  v_mov_b32 v59, s{sBASE}"); A(f"  v_mov_b32 v{VPG}, {GN//2}")
        tk = sorted(k0 + niter - r for r in TK if r <= niter)
        for w in range(4):
            m = sum(1 << t for i, t in enumerate(tk) if i % 4 == w)
            assert not (m & (m << 1))
            A(f"  s_cmp_eq_u32 s{sW}, {w}"); A(f"  s_cmov_b32 s40, {hex(m & 0xffffffff)}"); A(f"  s_cmov_b32 s41, {hex(m >> 32)}")
        A(f"  s_lshl_b64 s[42:43], s[40:41], 1")
        A(f"  v_cmp_eq_u32 vcc, 0, v0"); A(f"  v_cndmask_b32 v{VPL}, 0, {2*KW}, vcc")
        A(f"  v_mov_b32 v{VPS}, {-5*KW}"); A(f"  v_lshlrev_b32 v57, 2, v0")
    pre = L; L = []; A = L.append
    nrare = len(rare)
    A("L_loop:")
    for j in range(12):
        o = kv[ki + j]
        l = kv_load(o.step, o.kind == "v", o.t, loop=True)
        if vers and j == 10:
            A(f"  ds_read_b64 v[58:59], v{VZ} offset:{FL+8}")
            A(f"  ds_add_rtn_u32 v{VPS}, v57, v{VPL} offset:{FL+16}")
        wait(D - 1); issue(l); drain()
    A(f"  s_cmp_lt_u32 s{sIDX}, {k0 + niter}"); A("  s_cbranch_scc1 L_loop")
    body = L; L = []; A = L.append
    if vers:
        core = pad(body[1:-2]); rb = rare[nrare:]; del rare[nrare:]
        check_loop(core)
        body = ["L_disp:", "  s_waitcnt lgkmcnt(0)", f"  v_readfirstlane_b32 s{sD}, v58",
                f"  s_bitcmp1_b64 s[40:41], s{sIDX}", "  s_cbranch_scc1 L_duty", f"  s_bitcmp1_b64 s[42:43], s{sIDX}", "  s_cbranch_scc1 L_proc", "L_sel:",
                f"  v_readfirstlane_b32 s{sTMP}, v{VPS}", f"  s_mul_i32 s{sTMP2}, s{sIDX}, {8*KW}", f"  s_sub_i32 s{sTMP}, s{sTMP}, s{sTMP2}",
                f"  s_add_i32 s{sD}, s{sD}, s{sTMP}", f"  s_add_i32 s{sD}, s{sD}, {8*KW*(k0+1) - 3*KW}",
                f"  s_ashr_i32 s{sD}, s{sD}, 6", f"  s_max_i32 s{sD}, s{sD}, 0", f"  s_min_i32 s{sD}, s{sD}, {len(vers)-1}"]
        R = ["L_duty:", f"  v_mov_b32 v{VPG}, 1", f"  s_mul_i32 s{sTMP}, s{sIDX}, {LST}",
             f"  s_mul_i32 s{sTMP2}, s{sIDX}, s100", f"  s_add_u32 s{sTMP2}, s{sTMP2}, s101",
             f"  s_and_b32 s{sTMP2}, s{sTMP2}, {256//GN-1}", f"  s_mul_i32 s{sTMP2}, s{sTMP2}, {64*LST+256}", f"  s_add_u32 s{sTMP}, s{sTMP}, s{sTMP2}",
             "  s_mov_b64 exec, 1", f"  buffer_atomic_add v{VPG}, v{VZ}, {srd(SPG)}, s{sTMP} offen sc0 sc1", "  s_mov_b64 exec, -1", "  s_branch L_sel"]
        rare.extend(pad(R))
        R = ["L_proc:", f"  v_readfirstlane_b32 s{sTMP}, v{VPG}", f"  v_readfirstlane_b32 s{sBASE}, v59",
             f"  s_min_u32 s{sTMP}, s{sTMP}, {GN-1}", f"  s_lshl_b32 s{sTMP}, s{sTMP}, 1", f"  s_sub_i32 s{sTMP}, s{sTMP}, {GN-1}",
             f"  s_mul_i32 s{sTMP2}, s{sTMP}, {KI}", f"  s_add_i32 s{sBASE}, s{sBASE}, s{sTMP2}",
             f"  s_max_i32 s{sBASE}, s{sBASE}, {round(ILO*64)}", f"  s_min_i32 s{sBASE}, s{sBASE}, {round(IHI*64)}",
             f"  s_mul_i32 s{sTMP}, s{sTMP}, {KP}", f"  s_add_i32 s{sD}, s{sTMP}, s{sBASE}",
             f"  v_mov_b32 v60, s{sD}", f"  v_mov_b32 v61, s{sBASE}", f"  ds_write_b64 v{VZ}, v[60:61] offset:{FL+8}", "  s_branch L_sel"]
        rare.extend(pad(R))
        for i in range(1, len(vers)):
            body += [f"  s_cmp_eq_u32 s{sD}, {i}", f"  s_cbranch_scc1 L_v{i}"]
        for i, d in enumerate(vers):
            assert d <= D
            ren = lambda s: re.sub(r"(L_r[sb]\d+)", lambda m: m.group(1) + f"_{i}", s)
            body.append(f"L_v{i}:")
            c = 0
            for ln in core:
                if ln == f"  s_waitcnt vmcnt({D-1})":
                    dd = math.floor(d) if c % 2 == 0 else math.ceil(d); c += 1
                    ln = f"  s_waitcnt vmcnt({dd-1})"
                body.append(ren(ln))
            assert c == 12
            body += [f"  s_cmp_lt_u32 s{sIDX}, {k0 + niter}", "  s_cbranch_scc1 L_disp"]
            if i < len(vers) - 1: body.append("  s_branch L_tail")
            rare.extend(ren(x) for x in rb)
        body.append("L_tail:")
    ki += 12*niter
    while ki < 768:
        wait(D - 1); issue(kv[ki]); ki += 1; drain()
    for n in range(D - 1, -1, -1):
        wait(n); drain()
    assert cptr[0] == len(S)
    stamp(4)
    A(f"  v_add_f32_dpp v{VLS}, v{VLS}, v{VLS} row_ror:8 row_mask:0xf bank_mask:0xf")
    A(f"  v_lshlrev_b32 v57, 8, v3"); A(f"  v_add_u32 v57, v56, v57")
    A(f"  v_lshl_add_u32 v58, v9, 1, v56")
    A(f"  v_lshrrev_b32 v59, 1, v0"); A(f"  s_lshl_b32 s{sTMP}, s{sW}, 5"); A(f"  v_add_u32 v59, s{sTMP}, v59")
    A(f"  v_mov_b32 v60, v{VNML}"); A(f"  v_mov_b32 v61, v{VLS}")
    A("  s_mov_b32 exec_lo, 0x00ff00ff"); A("  s_mov_b32 exec_hi, 0xff00ff00")
    A(f"  ds_write_b128 v57, {v4(ACC)} offset:{OP}"); A(f"  ds_write_b128 v57, {v4(ACC+4)} offset:{OP+256}"); A(f"  ds_write_b128 v58, {v4(ACC+8)} offset:{OP}")
    A("  s_mov_b32 exec_lo, 0x00010001"); A("  s_mov_b32 exec_hi, 0x00010001")
    A(f"  ds_write_b64 v59, v[60:61] offset:{ML}")
    A("  s_mov_b64 exec, -1")
    A(f"  v_mov_b32 v57, 0")
    A(f"  s_mul_i32 s{sTMP}, s{sW}, 192"); A(f"  v_lshlrev_b32 v58, 2, v0"); A(f"  v_add_u32 v58, s{sTMP}, v58")
    A("  s_waitcnt lgkmcnt(0)"); A("  s_barrier")
    stamp(1, 1)
    E = 112
    for k in range(8): A(f"  ds_read_b128 {v4(E+4*k)}, v57 offset:{ML+16*k}")
    for p in range(8): A(f"  ds_read_b32 v{E+32+p}, v58 offset:{OP+768*p}")
    OA = 64
    for r in range(20): A(f"  v_mov_b32 v{OA+r}, 0")
    A("  s_waitcnt lgkmcnt(0)" if stamps else "  s_waitcnt lgkmcnt(8)")
    A(f"  v_min_f32 v{VTMP}, v{E}, v{E+8}"); A(f"  v_min3_f32 v{VTMP}, v{E+16}, v{E+24}, v{VTMP}")
    for w in range(4):
        A(f"  v_sub_f32 v{E+8*w}, v{VTMP}, v{E+8*w}"); A(f"  v_exp_f32 v{E+8*w}, v{E+8*w}")
        A(f"  v_add_f32 v{E+8*w+1}, v{E+8*w+1}, v{E+8*w+3}"); A(f"  v_add_f32 v{E+8*w+5}, v{E+8*w+5}, v{E+8*w+7}"); A(f"  v_add_f32 v{E+8*w+1}, v{E+8*w+1}, v{E+8*w+5}")
    A(f"  v_mul_f32 v{VP}, v{E}, v{E+1}")
    for w in range(1, 4): A(f"  v_fma_f32 v{VP}, v{E+8*w}, v{E+8*w+1}, v{VP}")
    A(f"  v_rcp_f32 v{VP}, v{VP}")
    A("  s_waitcnt lgkmcnt(0)")
    for w in range(4): A(f"  v_add_f32 v{E+32+2*w}, v{E+32+2*w}, v{E+33+2*w}")
    A(f"  v_mul_f32 v{VS}, v{E}, v{E+32}")
    for w in range(1, 4): A(f"  v_fma_f32 v{VS}, v{E+8*w}, v{E+32+2*w}, v{VS}")
    A(f"  v_mul_f32 v{VS}, v{VS}, v{VP}")
    A(f"  v_cvt_pk_bf16_f32 v{VS}, v{VS}, v{VS}")
    A(f"  s_lshl_b32 s{sTMP}, s{sW}, 7"); A(f"  v_lshlrev_b32 v58, 1, v0"); A(f"  v_add_u32 v58, s{sTMP}, v58")
    A(f"  ds_write_b16 v58, v{VS} offset:{OB}")
    A(f"  v_mul_u32_u24 v59, 24, v4"); A(f"  v_add_u32 v59, s{sTMP}, v59")
    A("  s_waitcnt lgkmcnt(0)")
    for k in range(3): A(f"  ds_read_b64 v[{Q+2*k}:{Q+2*k+1}], v59 offset:{OB+8*k}")
    A(f"  v_lshlrev_b32 v57, 1, v1"); A(f"  v_bfe_u32 v58, v0, 4, 1"); A(f"  v_lshl_add_u32 v57, v58, 4, v57"); A(f"  v_lshl_add_u32 v57, v3, 8, v57")
    A(f"  s_mul_i32 s{sTMP}, s{sW}, 2560"); A(f"  v_add_u32 v57, s{sTMP}, v57")
    A("  s_waitcnt lgkmcnt(0)")
    stamp(2, 1)
    for rb in range(12):
        sel = SEL if rb % 2 == 0 else ACC
        A(f"  v_perm_b32 v{VP}, v{Q + rb//2}, v{Q + rb//2}, s{sPHI if rb % 2 else sPLO}")
        for k in range(4): A(f"  v_and_b32 v{sel+k}, v{VP}, v{MK+k}")
        for tp in range(5):
            A(f"  v_mfma_f32_16x16x32_bf16 {v4(OA+4*tp)}, {v4(sel)}, {v4(wo_reg(rb*5+tp),'a')}, {v4(OA+4*tp)}")
    A("  s_mov_b32 exec_hi, 0")
    for tp in range(5): A(f"  ds_write_b128 v57, {v4(OA+4*tp)} offset:{FP+512*tp}")
    A("  s_mov_b64 exec, -1")
    A(f"  s_lshl_b32 s{sTMP}, s{sW}, 10"); A(f"  v_lshlrev_b32 v58, 4, v0"); A(f"  v_add_u32 v58, s{sTMP}, v58")
    A("  s_waitcnt lgkmcnt(0)"); A("  s_barrier")
    stamp(3, 1)
    A(f"  s_cmp_eq_u32 s{sW}, 3"); A("  s_cbranch_scc1 L_skipst")
    for w in range(4): A(f"  ds_read_b128 {v4(E+4*w)}, v58 offset:{FP+2560*w}")
    A(f"  s_mul_i32 s{sTMP}, s{sH}, 2560")
    A(f"  v_cmp_gt_u32 vcc, 2560, v58")
    A("  s_waitcnt lgkmcnt(0)")
    for r in range(4):
        A(f"  v_add_f32 v{E+r}, v{E+r}, v{E+4+r}"); A(f"  v_add_f32 v{E+8+r}, v{E+8+r}, v{E+12+r}"); A(f"  v_add_f32 v{E+r}, v{E+r}, v{E+8+r}")
    A("  s_mov_b64 exec, vcc")
    A(f"  buffer_store_dwordx4 {v4(E)}, v58, {srd(SWS)}, s{sTMP} offen sc1")
    A("  s_mov_b64 exec, -1")
    A("  s_waitcnt vmcnt(0)")
    A("L_skipst:")
    stamp(5)
    A("  s_barrier")
    A(f"  v_mov_b32 v59, 0")
    A(f"  s_cmp_lg_u32 s{sW}, 0"); A("  s_cbranch_scc1 L_skipat")
    A(f"  s_lshl_b32 s{sTMP}, s{sB}, 5")
    A("  v_mov_b32 v60, 1")
    A("  s_mov_b64 exec, 1")
    A(f"  buffer_atomic_add v60, v59, {srd(SDBG)}, s{sTMP} offen sc0 sc1")
    A("  s_waitcnt vmcnt(0)")
    A(f"  ds_write_b32 v59, v60 offset:{FL}")
    A("  s_mov_b64 exec, -1")
    A("  s_waitcnt lgkmcnt(0)")
    A("L_skipat:")
    A("  s_barrier")
    A(f"  ds_read_b32 v60, v59 offset:{FL}")
    A("  s_waitcnt lgkmcnt(0)")
    A(f"  v_readfirstlane_b32 s{sTMP}, v60")
    A(f"  s_cmp_lg_u32 s{sTMP}, 31"); A("  s_cbranch_scc1 L_fin")
    A(f"  v_lshlrev_b32 v57, 4, v0")
    A(f"  s_mul_i32 s{sTMP}, s{sW}, 20480")
    for k in range(20):
        if k and k % 4 == 0: A(f"  s_add_u32 s{sTMP}, s{sTMP}, 4096")
        o = (k % 4)*1024
        A(f"  buffer_load_dwordx4 {v4(E+4*k)}, v57, {srd(SWS)}, s{sTMP} offen" + (f" offset:{o}" if o else "") + " sc1")
    A(f"  s_mul_i32 s{sTMP}, s{sW}, 5120"); A(f"  v_add_u32 v57, s{sTMP}, v57")
    for k in range(5, 20):
        A(f"  s_waitcnt vmcnt({19-k})")
        for r in range(4): A(f"  v_add_f32 v{E+4*(k%5)+r}, v{E+4*(k%5)+r}, v{E+4*k+r}")
    for k in range(5): A(f"  ds_write_b128 v57, {v4(E+4*k)} offset:{RP+1024*k}")
    A("  s_waitcnt lgkmcnt(0)"); A("  s_barrier")
    A(f"  s_cmp_eq_u32 s{sW}, 3"); A("  s_cbranch_scc1 L_fin")
    for p in range(8): A(f"  ds_read_b128 {v4(E+4*p)}, v58 offset:{RP+2560*p}")
    A(f"  v_lshrrev_b32 v58, 1, v58")
    A("  s_waitcnt lgkmcnt(0)")
    for r in range(4):
        for p in range(1, 8): A(f"  v_add_f32 v{E+r}, v{E+r}, v{E+4*p+r}")
    A(f"  v_cvt_pk_bf16_f32 v{E}, v{E}, v{E+1}"); A(f"  v_cvt_pk_bf16_f32 v{E+1}, v{E+2}, v{E+3}")
    A(f"  buffer_store_dwordx2 v[{E}:{E+1}], v58, {srd(SOUT)}, 0 offen")
    A("  s_waitcnt vmcnt(0)")
    A("L_fin:")
    if stamps:
        stamp(6)
        A("  s_getreg_b32 s94, hwreg(HW_REG_XCC_ID)"); A("  s_and_b32 s94, s94, 7"); A(f"  s_lshl_b32 s{sBH}, s{sBH}, 8"); A(f"  s_or_b32 s94, s94, s{sBH}")
        A(f"  s_lshl_b32 s{sFB}, s{sFB}, 24"); A(f"  s_or_b32 s94, s94, s{sFB}")
        A("  s_waitcnt lgkmcnt(0)")
        A(f"  s_lshl_b32 s{sTMP}, s2, 2"); A(f"  s_add_u32 s{sTMP}, s{sTMP}, s{sW}"); A(f"  s_lshl_b32 s{sTMP}, s{sTMP}, 5")
        A(f"  s_mov_b32 s{SWS}, s54"); A(f"  s_mov_b32 s{SWS+1}, s55"); A(f"  s_mov_b32 s{SWS+2}, 0x100000"); A(f"  s_mov_b32 s{SWS+3}, 0x20000")
        for k in range(8): A(f"  v_mov_b32 v{4+k}, s{80+2*k}")
        A("  v_mov_b32 v3, 0")
        A("  s_mov_b64 exec, 1"); A(f"  buffer_store_dwordx4 v[4:7], v3, {srd(SWS)}, s{sTMP} offen"); A(f"  buffer_store_dwordx4 v[8:11], v3, {srd(SWS)}, s{sTMP} offen offset:16"); A("  s_waitcnt vmcnt(0)")
    A("L_end:"); A("  s_endpgm")
    post = L
    allp = pad(pre + body + post)
    if not vers:
        i0 = allp.index("L_loop:"); i1 = allp.index("  s_cbranch_scc1 L_loop")
        check_loop(allp[i0:i1+1])
    T = [HDR.rstrip("\n"), f"; @launch grid=(256,1,1) block=(256,1,1) lds={LDS}",
         '.amdgcn_target "amdgcn-amd-amdhsa--gfx950"', ".text", f".globl {NAME}", ".p2align 8", f".type {NAME},@function", f"{NAME}:"]
    T += allp + rare
    T += ['.section .rodata,"a"', ".p2align 6", f".amdhsa_kernel {NAME}", "  .amdhsa_next_free_vgpr 512", "  .amdhsa_next_free_sgpr 102",
          "  .amdhsa_accum_offset 256", "  .amdhsa_group_segment_fixed_size 0", "  .amdhsa_kernarg_size 64", "  .amdhsa_user_sgpr_count 2",
          "  .amdhsa_user_sgpr_kernarg_segment_ptr 1", "  .amdhsa_system_sgpr_workgroup_id_x 1", ".end_amdhsa_kernel"]
    open(fn, "w").write("\n".join(T) + "\n")
    sys.stderr.write(f"{fn}: qpos={qpos} n0={n0} k0={k0} niter={niter} lines={len(T)}\n")
    return fn
if __name__ == "__main__":
    from build import build
    import genk
    os.makedirs("k", exist_ok=True)
    cfgs = eval(open(sys.argv[1]).read())
    outs = []
    for n, kw in cfgs.items():
        kw = dict(kw); g = genk.gen if kw.pop("old", False) else gen
        g(f"k/{n}.s", **kw); build(f"k/{n}.s", quiet=True); outs.append(f"k/{n}.co")
    print(" ".join(outs))
```

```python
import sys, os, re, math, struct
from hz import pad, check_loop
NAME = "standalone__gqa_block_cached__decode_kernel"
HDR = open("standalone__gqa_block_cached__decode.s.ref").read().split("; Override launch")[0]
def f2u(f): return struct.unpack("<I", struct.pack("<f", f))[0]
LOG2E = 1.4426950408889634
SCALE = 192 ** -0.5
def mulshift(div, maxv):
    for sh in range(4, 24):
        m = (1 << sh) // div + 1
        if m * maxv < (1 << 24) * 256 and m < (1 << 24) and all(((v * m) >> sh) == v // div for v in range(maxv + 1)):
            if m * maxv < (1 << 32): return m, sh
    raise Exception("no mulshift")
QB = 0
OP = 512
ML = OP + 6144
OB = ML + 128
FL = OB + 512
PP = FL + 288
FP = PP + 4096
RP = FP + 10240
WT = FP
LDS = WT + 40960
WS_PART = 0x100000; WS_TICK = 0x200000; WS_QX = 0xC00000; WS_CNT = 0xE00000
TKA = [46,39,32,26,20,16,12,9,7,5,3]

def gen(fn, D=8, DA=8, DT=8, R1=63, R2=3, stamps=False, kvflags="nt", wo_per_step=3, NBIG=10, wflags="nt", SS=0,
        vers=(4.5,5,5.5,6,6.5,7,8), GN=8, KP=16, KI=2, BASE=3.0, ILO=1.0, IHI=6.0, LST=4352, PB=0.7, KW=16, TK=TKA,
        F0=6, POLL=36, CS=4352, BR=2, NSPIN=64, FORCEFB=False, WO0=None, WE=2, WR=2, PW=0, CW=1, PD=2, QD=3, BURST=0, DBG='', wqflags='nt'):
    L = []; A = L.append
    rare = []
    VA0, VA2, VL0, VL2, VT = 10, 11, 12, 13, 14
    MK = 16; Q = 20; ACC = 32; SEL = 44
    VS, VTMP, VM, VNML, VLS, VP, VWQ, VWO = 48, 49, 50, 51, 52, 53, 54, 55
    RK, RV, BK = 64, 88, 112
    VPL, VPS, VPG, VZ = 15, 62, 63, 5
    VB0, VPO = 60, 61
    QA = 64
    XA = 232; QD4 = 104
    SK, SV, SWQ, SWO, SX, SWS, SOUT, SDBG = 8, 12, 16, 20, 24, 28, 32, 36
    SPG = 96; SQX = 4; SCN = 92 if not stamps else None
    sW, sB, sH, sBH, sOFF, sT, sIDX, sL0, sL1, sLOG, sSC, sPLO, sPHI, sTMP, sTMP2, sWOFF, sHI16 = 56, 57, 58, 59, 60, 61, 62, 63, 64, 65, 66, 67, 68, 69, 70, 71, 72
    sD = 73; sFB = 78; sBASE = 79; sCO = 3; sQO = 95
    def srd(n): return f"s[{n}:{n+3}]"
    def v4(n, p="v"): return f"{p}[{n}:{n+3}]"
    def v16(n): return f"v[{n}:{n+15}]"
    def stamp(k, ss=0):
        if SS and ss == 0 and k in (1, 2, 3): return
        if ss and ss != SS: return
        if stamps: A(f"  s_memrealtime s[{80+2*k}:{81+2*k}]")

    A(f"  s_cmp_ge_u32 s2, 256"); A("  s_cbranch_scc1 L_end")
    A("  s_load_dwordx16 s[40:55], s[0:1], 0")
    stamp(0)
    A("  v_lshrrev_b32 v1, 6, v0"); A(f"  v_readfirstlane_b32 s{sW}, v1")
    A("  v_and_b32 v0, 63, v0")
    A(f"  s_and_b32 s{sH}, s2, 7"); A(f"  s_lshl_b32 s{sH}, s{sH}, 2"); A(f"  s_bfe_u32 s{sTMP}, s2, {3 | (2 << 16)}"); A(f"  s_add_u32 s{sH}, s{sH}, s{sTMP}")
    A(f"  s_lshr_b32 s{sB}, s2, 5")
    A(f"  s_lshl_b32 s{sBH}, s{sB}, 5"); A(f"  s_add_u32 s{sBH}, s{sBH}, s{sH}")
    A("  v_and_b32 v1, 7, v0"); A("  v_lshlrev_b32 v1, 4, v1"); A("  v_lshrrev_b32 v2, 3, v0"); A("  v_and_b32 v3, 1, v2"); A("  v_lshrrev_b32 v4, 4, v0")
    A("  v_mul_u32_u24 v56, 80, v1"); A("  v_lshl_add_u32 v56, v4, 4, v56")
    A("  v_lshrrev_b32 v7, 2, v0"); A(f"  v_mul_u32_u24 v{VWQ}, 12288, v7"); A("  v_and_b32 v6, 3, v0"); A(f"  v_lshl_add_u32 v{VWQ}, v6, 4, v{VWQ}")
    A(f"  v_mov_b32 v{VZ}, 0")
    A("  v_add_u32 v6, 1, v2"); A("  v_mul_u32_u24 v6, 11, v6"); A("  v_lshrrev_b32 v6, 5, v6"); A("  v_mul_u32_u24 v6, 84, v6")
    A("  v_mul_u32_u24 v7, 85, v2"); A("  v_add_u32 v7, 84, v7"); A("  v_sub_u32 v7, v7, v6"); A("  v_mul_u32_u24 v7, 384, v7"); A("  v_add_u32 v7, v7, v1")
    A("  v_lshlrev_b32 v8, 7, v3")
    A("  v_lshlrev_b32 v9, 8, v3"); A("  v_sub_u32 v9, 256, v9")
    A(f"  v_add_u32 v{VL0}, v7, v8"); A(f"  v_add_u32 v{VL2}, v7, v9")
    A(f"  s_mul_i32 s{sL0}, s{sW}, {2*196608}"); A(f"  s_add_u32 s{sL1}, s{sL0}, 196608")
    A(f"  s_mul_i32 s{sTMP}, s{sW}, 320")
    A(f"  s_mul_i32 s{sTMP2}, s{sW}, {160*12288}"); A(f"  s_mul_i32 s{sOFF}, s{sH}, 384"); A(f"  s_add_u32 s{sTMP2}, s{sTMP2}, s{sOFF}")
    A(f"  s_min_u32 s{sOFF}, s{sB}, 5"); A(f"  s_lshl_b32 s{sOFF}, s{sOFF}, 6"); A(f"  s_add_u32 s{sTMP2}, s{sTMP2}, s{sOFF}")
    A(f"  s_mul_i32 s{sOFF}, s{sBH}, 1572864")
    A(f"  s_lshl_b32 s{sCO}, s{sH}, 3"); A(f"  s_add_u32 s{sCO}, s{sCO}, s{sB}"); A(f"  s_mul_i32 s{sCO}, s{sCO}, {CS}"); A(f"  s_add_u32 s{sCO}, s{sCO}, {WS_CNT - WS_QX}")
    A(f"  s_mov_b32 s{SX+3}, 0x20000"); A(f"  s_mov_b32 s{SWQ+3}, 0x20000"); A(f"  s_mov_b32 s{SQX+3}, 0x20000"); A(f"  s_mov_b32 s{SK+3}, 0x20000"); A(f"  s_mov_b32 s{SV+3}, 0x20000")
    A(f"  s_sub_u32 s{SX+2}, 10240, s{sTMP}"); A(f"  s_cmp_lt_u32 s{sB}, 6"); A(f"  s_cselect_b32 s{SWQ+2}, {159*12288+64}, 0"); A(f"  s_mov_b32 s{SQX+2}, {WS_CNT - WS_QX + 256*CS}")
    A(f"  s_mov_b32 s{SK+2}, 1572864"); A(f"  s_mov_b32 s{SV+2}, 1572864")
    A(f"  s_cmp_eq_u32 s{sW}, {CW}"); A(f"  s_cselect_b32 s76, 0xffffff, 0"); A(f"  s_mov_b32 s77, 0")
    A("  s_waitcnt lgkmcnt(0)")
    A(f"  s_add_u32 s{SX}, s40, s{sTMP}"); A(f"  s_addc_u32 s{SX+1}, s41, 0")
    A(f"  s_add_u32 s{SWQ}, s46, s{sTMP2}"); A(f"  s_addc_u32 s{SWQ+1}, s47, 0")
    A(f"  s_add_u32 s{SQX}, s54, {WS_QX}"); A(f"  s_addc_u32 s{SQX+1}, s55, 0")
    A(f"  s_add_u32 s{SK}, s42, s{sOFF}"); A(f"  s_addc_u32 s{SK+1}, s43, 0")
    A(f"  s_add_u32 s{SV}, s44, s{sOFF}"); A(f"  s_addc_u32 s{SV+1}, s45, 0")

    def setup2():
        A(f"  s_mul_i32 s{sTMP}, s{sH}, {192*1280}"); A(f"  s_mul_i32 s{sTMP2}, s{sW}, {48*1280}"); A(f"  s_add_u32 s{sTMP}, s{sTMP}, s{sTMP2}")
        A(f"  s_add_u32 s{SWO}, s48, s{sTMP}"); A(f"  s_addc_u32 s{SWO+1}, s49, 0"); A(f"  s_mov_b32 s{SWO+2}, {48*1280}"); A(f"  s_mov_b32 s{SWO+3}, 0x20000")
        A(f"  s_mul_i32 s{sTMP}, s{sB}, {32*2560}"); A(f"  s_add_u32 s{sTMP}, s{sTMP}, {WS_PART}")
        A(f"  s_add_u32 s{SWS}, s54, s{sTMP}"); A(f"  s_addc_u32 s{SWS+1}, s55, 0"); A(f"  s_mov_b32 s{SWS+2}, {32*2560}"); A(f"  s_mov_b32 s{SWS+3}, 0x20000")
        A(f"  s_mul_i32 s{sTMP}, s{sB}, 1280")
        A(f"  s_add_u32 s{SOUT}, s50, s{sTMP}"); A(f"  s_addc_u32 s{SOUT+1}, s51, 0"); A(f"  s_mov_b32 s{SOUT+2}, 1280"); A(f"  s_mov_b32 s{SOUT+3}, 0x20000")
        A(f"  s_mov_b32 s{SDBG}, s52"); A(f"  s_mov_b32 s{SDBG+1}, s53"); A(f"  s_mov_b32 s{SDBG+2}, 256"); A(f"  s_mov_b32 s{SDBG+3}, 0x20000")
        A(f"  s_mov_b32 s{sLOG}, {hex(f2u(LOG2E))}"); A(f"  s_mov_b32 s{sSC}, {hex(f2u(SCALE))}")
        A(f"  s_mov_b32 s{sPLO}, 0x01000100"); A(f"  s_mov_b32 s{sPHI}, 0x03020302"); A(f"  s_mov_b32 s{sHI16}, 0xffff0000")
        A(f"  s_mov_b32 s{sFB}, 0")
        if stamps: A(f"  s_mov_b32 s{sBH}, 0")
        A("  v_mul_u32_u24 v6, 384, v4"); A(f"  v_mul_u32_u24 v7, {85*384}, v3"); A("  v_add_u32 v6, v6, v7"); A("  v_add_u32 v6, v6, v1")
        A(f"  v_add_u32 v{VA0}, v6, v8"); A(f"  v_add_u32 v{VA2}, v6, v9")
        A(f"  v_mul_u32_u24 v{VWO}, {12*1280}, v4"); A(f"  v_add_u32 v{VWO}, v{VWO}, v8"); A(f"  v_add_u32 v{VWO}, v{VWO}, v1")
        A("  v_and_b32 v6, 1, v0"); A("  v_lshlrev_b32 v6, 4, v6"); A("  v_mov_b32 v7, 0xffff"); A("  v_lshlrev_b32 v7, v6, v7")
        A("  v_bfe_u32 v6, v0, 1, 2")
        for k in range(4):
            A(f"  v_cmp_eq_u32 vcc, {k}, v6"); A(f"  v_cndmask_b32 v{MK+k}, 0, v7, vcc")
        A(f"  s_bfe_u32 s{sTMP}, s2, {3 | (3 << 16)}"); A(f"  s_mul_i32 s{sTMP}, s{sTMP}, {R1}")
        A(f"  s_bfe_u32 s{sTMP2}, s2, {6 | (2 << 16)}"); A(f"  s_mul_i32 s{sTMP2}, s{sTMP2}, {R2}"); A(f"  s_add_u32 s{sTMP}, s{sTMP}, s{sTMP2}")
        A(f"  s_add_u32 s{sTMP}, s{sTMP}, s{sW}")
        assert 7*R1 + 3*R2 < 504
        m21, s21 = mulshift(21, 1100); m3, s3 = mulshift(3, 60)
        for half in range(2):
            A("  v_lshlrev_b32 v6, 1, v0")
            if half: A("  v_add_u32 v6, 1, v6")
            A("  v_lshlrev_b32 v6, 2, v6")
            A(f"  v_add_u32 v6, s{sTMP}, v6")
            A("  v_subrev_u32 v7, 504, v6"); A("  v_cmp_le_u32 vcc, 504, v6"); A("  v_cndmask_b32 v6, v6, v7, vcc")
            A(f"  v_mul_u32_u24 v7, {m21}, v6"); A(f"  v_lshrrev_b32 v7, {s21}, v7")
            A(f"  v_mul_u32_u24 v57, {m3}, v7"); A(f"  v_lshrrev_b32 v57, {s3}, v57")
            A("  v_mul_u32_u24 v7, 87, v7"); A("  v_sub_u32 v7, v7, v57"); A("  v_lshl_add_u32 v7, v6, 2, v7")
            if half == 0: A(f"  v_and_b32 v{VT}, 0xffff, v7")
            else: A(f"  v_lshl_or_b32 v{VT}, v7, 16, v{VT}")
        if vers:
            lg = GN.bit_length() - 1
            A(f"  s_lshr_b32 s101, s2, {lg}")
            A(f"  s_mul_i32 s{sTMP2}, s101, {64*LST + 256}")
            A(f"  s_add_u32 s{SPG}, s54, {WS_TICK}"); A(f"  s_addc_u32 s{SPG+1}, s55, 0"); A(f"  s_mov_b32 s{SPG+2}, {(256//GN)*(64*LST+256)}"); A(f"  s_mov_b32 s{SPG+3}, 0x20000")
            A(f"  s_getreg_b32 s{sBASE}, hwreg(HW_REG_XCC_ID)"); A(f"  s_and_b32 s{sBASE}, s{sBASE}, 1")
            A(f"  s_mul_i32 s{sBASE}, s{sBASE}, {round(2*PB*64)}"); A(f"  s_add_u32 s{sBASE}, s{sBASE}, {round((BASE+0.5-PB)*64)}")
            A(f"  v_mov_b32 v58, s{sBASE}"); A(f"  v_mov_b32 v59, s{sBASE}"); A(f"  ds_write_b64 v{VZ}, v[58:59] offset:{FL+8}")
            A(f"  ds_write_b32 v{VZ}, v{VZ} offset:{FL+16}")
            A(f"  s_lshl_b32 s{sTMP}, s2, 2"); A(f"  s_add_u32 s{sTMP}, s{sTMP}, s{sW}")
            A(f"  v_xor_b32 v6, s{sTMP}, v0"); A(f"  v_and_b32 v6, {min(4*GN,64)-1}, v6"); A(f"  v_cmp_eq_u32 vcc, 0, v6")
            A(f"  v_mul_u32_u24 v6, {LST}, v0")
            A(f"  s_mov_b64 exec, vcc")
            if 'z' not in DBG: A(f"  buffer_store_dword v{VZ}, v6, {srd(SPG)}, s{sTMP2} offen sc1")
            A(f"  s_mov_b64 exec, -1")
            A(f"  s_and_b32 s100, s2, {GN-1}")
        A(f"  v_mov_b32 v{VM}, 0xff800000"); A(f"  v_mov_b32 v{VNML}, 0x7f800000"); A(f"  v_mov_b32 v{VLS}, 0")

    class Ld: pass
    def mk(kind, step, t, dstp, dst, text, pre=(), post=()):
        l = Ld(); l.kind, l.step, l.t, l.dstp, l.dst, l.text, l.pre, l.post = kind, step, t, dstp, dst, text, list(pre), list(post); l.done = False; return l
    def kv_load(n, isv, t, loop=False):
        if n < NBIG: p, d = ("a", 12*n + 4*t) if isv else ("v", BK + 12*n + 4*t)
        else: p, d = "v", (RV if isv else RK) + 12*(n % 2) + 4*t
        pre = []
        if n < 2:
            so = f"s{sL0 + n}"; va = VL2 if t == 2 else VL0
        else:
            so = f"s{sOFF}"; va = VA2 if t == 2 else VA0
            if not isv and t == 0:
                if n % 2 == 0: pre += [f"  s_and_b32 s{sOFF}, s{sT}, 0xffff", f"  s_mul_i32 s{sOFF}, s{sOFF}, 384"]
                else: pre += [f"  s_lshr_b32 s{sOFF}, s{sT}, 16", f"  s_mul_i32 s{sOFF}, s{sOFF}, 384"]
        if n % 2 == 1 and not isv and t == 1 and n + 1 < 128:
            k = (n + 1 - 2) // 2
            if loop: pre += [f"  v_readlane_b32 s{sT}, v{VT}, s{sIDX}", f"  s_add_u32 s{sIDX}, s{sIDX}, 1"]
            else: pre += [f"  v_readlane_b32 s{sT}, v{VT}, {k}"]
        off = f" offset:128" if t == 1 else ""
        txt = f"  buffer_load_dwordx4 {v4(d,p)}, v{va}, {srd(SV if isv else SK)}, {so} offen{off} {kvflags}"
        return mk("v" if isv else "k", n, t, p, d, txt, pre)
    def kv_step(n, loop=False): return [kv_load(n, isv, t, loop) for isv in (0, 1) for t in range(3)]
    def wq_load(i):
        d = 120 + 4*i
        pre = [f"  s_mov_b32 s{sWOFF}, {i*16*12288}"] if i else []
        so = f"s{sWOFF}" if i else "0"
        return mk("wq", i, 0, "a", d, f"  buffer_load_dwordx4 {v4(d,'a')}, v{VWQ}, {srd(SWQ)}, {so} offen {wqflags}", pre)
    def wo_reg(i): return (120 + 4*((i + 10) % 30)) if i < 30 else 4*(i - 30)
    def wo_load(i):
        rb, tp = divmod(i, 5); d = wo_reg(i)
        pre = [f"  s_mov_b32 s{sWOFF}, {(rb//3)*3840}"] if i % 15 == 0 else []
        o = (rb % 3)*1280 + 256*tp
        off = f" offset:{o}" if o else ""
        return mk("wo", rb, tp, "a", d, f"  buffer_load_dwordx4 {v4(d,'a')}, v{VWO}, {srd(SWO)}, s{sWOFF} offen{off} {wflags}", pre)
    def selector(src, sel=SEL):
        for k in range(4): A(f"  v_and_b32 v{sel+k}, v{src}, v{MK+k}")
    uid = [0]
    def xreg(s, i): return (Q + 4*s + i//2) if i < 8 else (Q + 8 + s)
    def consume(l):
        l.done = True
        if l.kind == "wq":
            A(f"  ds_write_b128 v56, {v4(l.dst, l.dstp)} offset:{1024*l.step}")
        elif l.kind == "k":
            for r in range(4):
                c = "0" if (l.t == 0 and r == 0) else f"v{VS}"
                A(f"  v_dot2_f32_bf16 v{VS}, v{l.dst+r}, v{Q+4*l.t+r}, {c}")
            if l.t == 2:
                A(f"  v_add_f32_dpp v{VS}, v{VS}, v{VS} quad_perm:[1,0,3,2] row_mask:0xf bank_mask:0xf")
                A(f"  v_add_f32_dpp v{VS}, v{VS}, v{VS} quad_perm:[2,3,0,1] row_mask:0xf bank_mask:0xf")
                A(f"  v_add_f32_dpp v{VS}, v{VS}, v{VS} row_half_mirror row_mask:0xf bank_mask:0xf")
                A(f"  v_cvt_pk_bf16_f32 v{VS}, v{VS}, v{VS}"); A(f"  v_and_b32 v{VS}, s{sHI16}, v{VS}")
                A(f"  v_mul_f32 v{VS}, s{sSC}, v{VS}")
                A(f"  v_cvt_pk_bf16_f32 v{VS}, v{VS}, v{VS}"); A(f"  v_and_b32 v{VS}, s{sHI16}, v{VS}")
                u = uid[0]; uid[0] += 1
                A(f"  v_cmp_gt_f32 vcc, v{VS}, v{VM}"); A(f"  s_cbranch_vccnz L_rs{u}"); A(f"L_rb{u}:")
                A(f"  v_fma_f32 v{VP}, v{VS}, s{sLOG}, v{VNML}"); A(f"  v_exp_f32 v{VP}, v{VP}")
                A(f"  v_cvt_pk_bf16_f32 v{VTMP}, v{VP}, v{VP}"); A(f"  v_add_f32 v{VLS}, v{VLS}, v{VP}")
                selector(VTMP)
                R = [f"L_rs{u}:", "  s_nop 7",
                     f"  v_max_f32_dpp v{VTMP}, v{VS}, v{VS} row_ror:8 row_mask:0xf bank_mask:0xf",
                     f"  v_readlane_b32 s74, v{VTMP}, 0", f"  v_readlane_b32 s75, v{VTMP}, 16", f"  v_readlane_b32 s76, v{VTMP}, 32", f"  v_readlane_b32 s77, v{VTMP}, 48",
                     f"  v_max_f32 v{VM}, s74, v{VM}", f"  v_max_f32 v{VM}, s75, v{VM}", f"  v_max_f32 v{VM}, s76, v{VM}", f"  v_max_f32 v{VM}, s77, v{VM}",
                     f"  v_mul_f32 v{VTMP}, s{sLOG}, v{VM}", f"  v_sub_f32 v{VP}, 0, v{VNML}",
                     f"  v_sub_f32 v{VP}, v{VP}, v{VTMP}", f"  v_exp_f32 v{VP}, v{VP}",
                     f"  v_sub_f32 v{VNML}, 0, v{VTMP}", f"  v_mul_f32 v{VLS}, v{VLS}, v{VP}"]
                R += [f"  v_mul_f32 v{ACC+r}, v{ACC+r}, v{VP}" for r in range(12)]
                R += [f"  s_branch L_rb{u}"]
                rare.extend(pad(R))
        elif l.kind == "v":
            A(f"  v_mfma_f32_16x16x32_bf16 {v4(ACC+4*l.t)}, {v4(SEL)}, {v4(l.dst,l.dstp)}, {v4(ACC+4*l.t)}")

    S = []; st = dict(comp=-1, mid=False, credit=0); owner = {}
    def wait(n):
        c = len(S) - 1 - n
        if c > st["comp"]:
            A(f"  s_waitcnt vmcnt({n})"); st["comp"] = c
    def issue(l):
        key = (l.dstp, l.dst)
        if key in owner: assert owner[key].done, (l.kind, l.step, l.t, owner[key].kind, owner[key].step)
        owner[key] = l
        for p in l.pre: A(p)
        A(l.text); l.pos = len(S); S.append(l)
        for p in l.post: A(p)
    cptr = [0]; qready = [False]; backlog = []; wqq = []
    def try_backlog():
        while backlog and qready[0] and not st["mid"] and st["credit"] >= 6 and hasattr(backlog[0][-1], "pos") and backlog[0][-1].pos <= st["comp"]:
            for x in backlog.pop(0): consume(x)
            st["credit"] -= 6
    def drain():
        if qready[0]: st["credit"] += BR
        while cptr[0] <= st["comp"]:
            l = S[cptr[0]]
            if l.kind in ("k", "v"):
                if l.step < NBIG: pass
                elif not qready[0]: break
                else:
                    consume(l); st["mid"] = not (l.kind == "v" and l.t == 2)
                    try_backlog()
            elif l.kind == "wq": wqq.append(l)
            elif l.kind == "x": l.done = True
            cptr[0] += 1
        try_backlog()

    kv = []
    for n in range(128): kv += kv_step(n)
    for n in range(NBIG): backlog.append(kv[6*n:6*n+6])
    K = dict(i=0, wi=0, cnt=0, wo=False)
    def pump(d):
        if not qready[0]: assert K["i"] < 6*NBIG + 12
        wait(d - 1); issue(kv[K["i"]]); K["i"] += 1; drain()
        if K["wo"]:
            K["cnt"] += 1
            while K["wi"] < 60 and K["wi"] < K["cnt"]*wo_per_step//6:
                l = wo_load(K["wi"]); key = (l.dstp, l.dst)
                if K["wi"] >= 30 and key not in owner: break
                if key in owner and not owner[key].done: break
                wait(d - 1); issue(l); l.done = True; K["wi"] += 1; drain()
    for k in range(5):
        issue(mk("x", 0, 0, "v", XA+4*k, f"  buffer_load_dwordx4 {v4(XA+4*k)}, v56, {srd(SX)}, 0 offen" + (f" offset:{64*k}" if k else "")))
    issue(mk("x", 0, 0, "v", VB0, f"  buffer_load_dword v{VB0}, v{VZ}, {srd(SQX)}, s{sCO} offen sc1", ["  s_mov_b64 exec, s[76:77]"]))
    A("  s_mov_b64 exec, -1")
    for i in range(10): issue(wq_load(i))
    lastwq = len(S) - 1
    for i in range(F0): issue(kv[i])
    K["i"] = F0
    A(f"  ds_write_b32 v{VZ}, v{VZ} offset:{FL+4}"); A(f"  ds_write_b32 v{VZ}, v{VZ} offset:{FL+276}")
    setup2()
    A("  s_waitcnt lgkmcnt(0)"); A("  s_barrier")
    A(f"  v_lshlrev_b32 v58, 4, v0"); A(f"  s_mul_i32 s{sTMP}, s{sW}, 10240"); A(f"  s_add_u32 s{sTMP}, s{sTMP}, {WT}"); A(f"  v_add_u32 v56, s{sTMP}, v58")
    A(f"  v_bfe_u32 v57, v0, 2, 2"); A(f"  v_lshl_add_u32 v57, v4, 3, v57"); A(f"  v_lshlrev_b32 v57, 6, v57"); A(f"  v_and_b32 v6, 3, v0"); A(f"  v_lshl_add_u32 v57, v6, 3, v57"); A(f"  v_add_u32 v57, s{sTMP}, v57")
    A(f"  v_and_b32 v6, 15, v0"); A(f"  v_lshlrev_b32 v6, 2, v6"); A(f"  v_lshl_add_u32 v6, v4, 9, v6"); A(f"  s_lshl_b32 s{sTMP}, s{sW}, 10"); A(f"  v_add_u32 v6, s{sTMP}, v6")
    n = len(S) - 1 - 6
    while n >= DA:
        n -= 1; wait(n); drain()
        while wqq: consume(wqq.pop(0))
    while st["comp"] < lastwq or wqq:
        pump(DA)
        while wqq: consume(wqq.pop(0))
    for ks in range(5):
        for t in range(2):
            for j in range(2):
                r = QA + 8*ks + 4*t + 2*j
                A(f"  ds_read_b64_tr_b16 v[{r}:{r+1}], v57 offset:{2048*ks + 256*j + 32*t}")
    pump(DA)
    A("  s_waitcnt lgkmcnt(0)")
    for ks in range(5):
        for t in range(2):
            c = v4(QD4 + 4*t) if ks else "0"
            A(f"  v_mfma_f32_16x16x32_bf16 {v4(QD4 + 4*t)}, {v4(XA + 4*ks)}, {v4(QA + 8*ks + 4*t)}, {c}")
    pump(DA)
    A("  s_mov_b32 exec_hi, 0")
    for t in range(2):
        for r in range(4): A(f"  ds_write_b32 v6, v{QD4 + 4*t + r} offset:{PP + 128*r + 64*t}")
    A("  s_mov_b64 exec, 1"); A(f"  v_mov_b32 v59, 1")
    A("  s_waitcnt lgkmcnt(0)")
    A(f"  ds_add_u32 v{VZ}, v59 offset:{FL+4}")
    A("  s_mov_b64 exec, -1")
    for _ in range(PD): pump(DA)
    for i in range(BURST): pump(DA + i + 1)
    A(f"  s_mul_i32 s{sQO}, s{sH}, {8*384}")
    A(f"  s_cmp_lg_u32 s{sW}, {PW}"); A("  s_cbranch_scc1 L_nopub")
    A(f"  s_cmp_ge_u32 s{sB}, 6"); A("  s_cbranch_scc1 L_nopub")
    A(f"  s_lshl_b32 s{sTMP}, s{sB}, 6"); A(f"  s_add_u32 s74, s{sTMP}, s{sQO}")
    A(f"  v_mul_u32_u24 v6, 384, v2"); A(f"  v_lshrrev_b32 v7, 1, v1"); A(f"  v_add_u32 v6, v6, v7")
    A(f"  v_mul_u32_u24 v57, {CS}, v0"); A(f"  s_mul_i32 s{sTMP}, s{sB}, {CS}"); A(f"  s_sub_u32 s{sTMP2}, s{sCO}, s{sTMP}")
    A("L_pw:"); A(f"  ds_read_b32 v59, v{VZ} offset:{FL+4}"); A("  s_waitcnt lgkmcnt(0)"); A(f"  v_readfirstlane_b32 s{sTMP}, v59")
    A(f"  s_cmp_lg_u32 s{sTMP}, 4"); A("  s_cbranch_scc1 L_pw")
    for p in range(4): A(f"  ds_read_b128 {v4(QA + 4*p)}, v58 offset:{PP + 1024*p}")
    A(f"  v_mov_b32 v59, 1")
    A(f"  s_waitcnt lgkmcnt(0)")
    for r in range(4):
        A(f"  v_add_f32 v{QA+r}, v{QA+r}, v{QA+4+r}"); A(f"  v_add_f32 v{QA+8+r}, v{QA+8+r}, v{QA+12+r}"); A(f"  v_add_f32 v{QA+r}, v{QA+r}, v{QA+8+r}")
    A(f"  v_cvt_pk_bf16_f32 v{QA}, v{QA}, v{QA+1}"); A(f"  v_cvt_pk_bf16_f32 v{QA+1}, v{QA+2}, v{QA+3}")
    if 's' not in DBG: A(f"  buffer_store_dwordx2 v[{QA}:{QA+1}], v6, {srd(SQX)}, s74 offen sc1")
    if 'w' not in DBG: A("  s_waitcnt vmcnt(0)")
    A("  s_mov_b64 exec, 0xff")
    if 'a' not in DBG: A(f"  buffer_atomic_add v59, v57, {srd(SQX)}, s{sTMP2} offen sc1")
    A("  s_mov_b64 exec, -1")
    A("L_nopub:")
    stamp(1)
    if WO0 is not None:
        while K["i"] < WO0: pump(DA)
        K["wo"] = True
    while K["i"] < POLL: pump(DA)
    polltxt = f"  buffer_load_dword v{VPO}, v{VZ}, {srd(SQX)}, s{sCO} offen sc1"
    issue(mk("x", 0, 0, "v", VPO, polltxt, ["  s_mov_b64 exec, s[76:77]"], ["  s_mov_b64 exec, -1"])); p = len(S) - 1
    while st["comp"] < p: pump(DA)
    chk = [f"  v_sub_u32 v{VPO}, v{VPO}, v{VB0}", f"  v_readfirstlane_b32 s{sTMP}, v{VPO}", f"  s_cmp_eq_u32 s{sTMP}, {7 if FORCEFB else (0 if 'a' in DBG else 6)}"]
    A(f"  s_cmp_lg_u32 s{sW}, {CW}"); A("  s_cbranch_scc1 L_pok")
    for c in chk: A(c)
    A("  s_cbranch_scc0 L_spin"); A("L_pok:")
    FA, FD = 232, 248
    R = ["L_spin:", f"  s_mov_b32 s{sFB}, {NSPIN}", "L_spin1:", polltxt, "  s_waitcnt vmcnt(0)"] + chk + [
         "  s_cbranch_scc1 L_spin2", f"  s_sub_u32 s{sFB}, s{sFB}, 1", f"  s_cmp_lg_u32 s{sFB}, 0", "  s_cbranch_scc1 L_spin1",
         f"  s_mul_i32 s{sTMP}, s{sB}, 1280", f"  s_add_u32 s{SX}, s40, s{sTMP}", f"  s_addc_u32 s{SX+1}, s41, 0", f"  s_mov_b32 s{SX+2}, 1280",
         f"  s_mul_i32 s{sTMP}, s{sH}, 384", f"  s_add_u32 s{SWQ}, s46, s{sTMP}", f"  s_addc_u32 s{SWQ+1}, s47, 0", f"  s_mov_b32 s{SWQ+2}, {639*12288+384}",
         f"  v_lshrrev_b32 v252, 5, v0", f"  v_mul_u32_u24 v253, 640, v252", f"  v_mul_u32_u24 v252, {320*12288}, v252",
         f"  v_and_b32 v254, 31, v0", f"  v_min_u32 v254, 23, v254", f"  v_lshl_add_u32 v252, v254, 4, v252",
         f"  s_mov_b32 s{sTMP}, 0", f"  s_mov_b32 s{sTMP2}, 0"]
    R += [f"  v_mov_b32 v{FA+r}, 0" for r in range(16)]
    R += ["L_fb1:", f"  buffer_load_ushort v254, v253, {srd(SX)}, s{sTMP} offen", f"  buffer_load_dwordx4 {v4(FD)}, v252, {srd(SWQ)}, s{sTMP2} offen",
          "  s_waitcnt vmcnt(0)", f"  v_perm_b32 v{VP}, v254, v254, s{sPLO}"]
    R += [f"  v_and_b32 v{SEL+k}, v{VP}, v{MK+k}" for k in range(4)]
    R += [f"  v_mfma_f32_32x32x16_bf16 {v16(FA)}, {v4(SEL)}, {v4(FD)}, {v16(FA)}", "  s_nop 7", "  s_nop 7",
          f"  s_add_u32 s{sTMP}, s{sTMP}, 2", f"  s_add_u32 s{sTMP2}, s{sTMP2}, 12288", f"  s_cmp_lt_u32 s{sTMP}, 640", "  s_cbranch_scc1 L_fb1",
          f"  v_cvt_pk_bf16_f32 v{FD}, v{FA}, v{FA+1}", f"  v_cvt_pk_bf16_f32 v{FD+1}, v{FA+2}, v{FA+3}",
          f"  v_and_b32 v254, 31, v0", f"  v_lshlrev_b32 v254, 4, v254", f"  v_lshrrev_b32 v253, 5, v0", f"  v_lshl_add_u32 v254, v253, 3, v254",
          "  s_mov_b32 exec_lo, 0x00ffffff", "  s_mov_b32 exec_hi, 0x00ffffff",
          f"  ds_write_b64 v254, v[{FD}:{FD+1}] offset:{QB}", "  s_mov_b64 exec, -1", "  s_waitcnt lgkmcnt(0)",
          f"  s_mov_b32 s{sFB}, 1", "  s_branch L_pok",
          "L_spin2:"] + ([f"  s_sub_u32 s{sBH}, {NSPIN+1}, s{sFB}"] if stamps else []) + [f"  s_mov_b32 s{sFB}, 0", "  s_branch L_pok"]
    rare.extend(pad(R))
    A("  s_mov_b64 exec, s[76:77]" if 'l' not in DBG else "  s_mov_b64 exec, 0")
    issue(mk("x", 0, 0, "v", XA, f"  buffer_load_dwordx4 {v4(XA)}, v58, {srd(SQX)}, s74 offen sc1", [f"  s_mul_i32 s74, s{sB}, 384", f"  s_add_u32 s74, s74, s{sQO}"]))
    A("  s_mov_b64 exec, -1")
    p = len(S) - 1
    A(f"  v_add_u32 v60, v1, v8"); A(f"  v_add_u32 v61, v1, v9")
    while st["comp"] < p: pump(DA)
    A(f"  s_cmp_lg_u32 s{sW}, {CW}"); A("  s_cbranch_scc1 L_qno")
    A(f"  s_cmp_lg_u32 s{sFB}, 0"); A("  s_cbranch_scc1 L_qfb")
    A("  s_mov_b64 exec, s[76:77]")
    A(f"  ds_write_b128 v58, {v4(XA)} offset:{QB}")
    A("  s_mov_b64 exec, -1")
    A("L_qfb:")
    A(f"  v_mov_b32 v59, 1")
    A("  s_waitcnt lgkmcnt(0)")
    A(f"  ds_write_b32 v{VZ}, v59 offset:{FL+276}")
    A("L_qno:")
    for r in range(12): A(f"  v_mov_b32 v{ACC+r}, 0")
    for _ in range(QD): pump(DA)
    A("L_qw:"); A(f"  ds_read_b32 v59, v{VZ} offset:{FL+276}"); A("  s_waitcnt lgkmcnt(0)"); A(f"  v_readfirstlane_b32 s{sTMP}, v59")
    A(f"  s_cmp_eq_u32 s{sTMP}, 0"); A("  s_cbranch_scc1 L_qw")
    A(f"  ds_read_b128 {v4(Q)}, v60 offset:{QB}"); A(f"  ds_read_b128 {v4(Q+4)}, v60 offset:{QB+128}"); A(f"  ds_read_b128 {v4(Q+8)}, v61 offset:{QB}")
    A(f"  v_lshlrev_b32 v56, 1, v1"); A(f"  v_bfe_u32 v57, v0, 4, 1"); A(f"  v_lshl_add_u32 v56, v57, 4, v56")
    A(f"  v_mul_u32_u24 v57, 768, v3"); A(f"  v_add_u32 v56, v56, v57")
    A(f"  s_mul_i32 s{sTMP}, s{sW}, 1536"); A(f"  v_add_u32 v56, s{sTMP}, v56")
    pump(DA)
    A("  s_waitcnt lgkmcnt(0)")
    stamp(2)
    qpos = K["i"]
    qready[0] = True; K["wo"] = True
    st["credit"] = 6
    drain()
    while K["wi"] < 60: pump(DT)
    lastwo = len(S) - 1
    while True:
        pump(D)
        nxt = S[len(S) - D]
        if len(S) - D > lastwo and nxt.kind == "k" and nxt.t == 0 and nxt.step % 2 == 0 and not backlog and cptr[0] == len(S) - D: break
    ki = K["i"]
    n0 = nxt.step
    niter = (126 - n0)//2
    nread = [l for l in kv[ki:ki+12] if any("readlane" in p for p in l.pre)]
    assert len(nread) == 1
    k0 = (nread[0].step + 1 - 2)//2
    A(f"  s_mov_b32 s{sIDX}, {k0}")
    stamp(3)
    if vers:
        A(f"  v_mov_b32 v58, s{sBASE}"); A(f"  v_mov_b32 v59, s{sBASE}"); A(f"  v_mov_b32 v{VPG}, {GN//2}")
        tk = sorted(k0 + niter - r for r in TK if r <= niter)
        for w in range(4):
            m = sum(1 << t for i, t in enumerate(tk) if i % 4 == w)
            assert not (m & (m << 1))
            A(f"  s_cmp_eq_u32 s{sW}, {w}"); A(f"  s_cmov_b32 s40, {hex(m & 0xffffffff)}"); A(f"  s_cmov_b32 s41, {hex(m >> 32)}")
        A(f"  s_lshl_b64 s[42:43], s[40:41], 1")
        A(f"  v_cmp_eq_u32 vcc, 0, v0"); A(f"  v_cndmask_b32 v{VPL}, 0, {2*KW}, vcc")
        A(f"  v_mov_b32 v{VPS}, {-5*KW}"); A(f"  v_lshlrev_b32 v57, 2, v0")
    pre = L; L = []; A = L.append
    nrare = len(rare)
    A("L_loop:")
    for j in range(12):
        o = kv[ki + j]
        l = kv_load(o.step, o.kind == "v", o.t, loop=True)
        if vers and j == 10:
            A(f"  ds_read_b64 v[58:59], v{VZ} offset:{FL+8}")
            A(f"  ds_add_rtn_u32 v{VPS}, v57, v{VPL} offset:{FL+16}")
        wait(D - 1); issue(l); drain()
    A(f"  s_cmp_lt_u32 s{sIDX}, {k0 + niter}"); A("  s_cbranch_scc1 L_loop")
    body = L; L = []; A = L.append
    if vers:
        core = pad(body[1:-2]); rb = rare[nrare:]; del rare[nrare:]
        check_loop(core)
        body = ["L_disp:", "  s_waitcnt lgkmcnt(0)", f"  v_readfirstlane_b32 s{sD}, v58",
                f"  s_bitcmp1_b64 s[40:41], s{sIDX}", "  s_cbranch_scc1 L_duty", f"  s_bitcmp1_b64 s[42:43], s{sIDX}", "  s_cbranch_scc1 L_proc", "L_sel:",
                f"  v_readfirstlane_b32 s{sTMP}, v{VPS}", f"  s_mul_i32 s{sTMP2}, s{sIDX}, {8*KW}", f"  s_sub_i32 s{sTMP}, s{sTMP}, s{sTMP2}",
                f"  s_add_i32 s{sD}, s{sD}, s{sTMP}", f"  s_add_i32 s{sD}, s{sD}, {8*KW*(k0+1) - 3*KW}",
                f"  s_ashr_i32 s{sD}, s{sD}, 6", f"  s_max_i32 s{sD}, s{sD}, 0", f"  s_min_i32 s{sD}, s{sD}, {len(vers)-1}"]
        R = ["L_duty:", f"  v_mov_b32 v{VPG}, 1", f"  s_mul_i32 s{sTMP}, s{sIDX}, {LST}",
             f"  s_mul_i32 s{sTMP2}, s{sIDX}, s100", f"  s_add_u32 s{sTMP2}, s{sTMP2}, s101",
             f"  s_and_b32 s{sTMP2}, s{sTMP2}, {256//GN-1}", f"  s_mul_i32 s{sTMP2}, s{sTMP2}, {64*LST+256}", f"  s_add_u32 s{sTMP}, s{sTMP}, s{sTMP2}",
             "  s_mov_b64 exec, 1", f"  buffer_atomic_add v{VPG}, v{VZ}, {srd(SPG)}, s{sTMP} offen sc0 sc1", "  s_mov_b64 exec, -1", "  s_branch L_sel"]
        rare.extend(pad(R))
        R = ["L_proc:", f"  v_readfirstlane_b32 s{sTMP}, v{VPG}", f"  v_readfirstlane_b32 s{sBASE}, v59",
             f"  s_min_u32 s{sTMP}, s{sTMP}, {GN-1}", f"  s_lshl_b32 s{sTMP}, s{sTMP}, 1", f"  s_sub_i32 s{sTMP}, s{sTMP}, {GN-1}",
             f"  s_mul_i32 s{sTMP2}, s{sTMP}, {KI}", f"  s_add_i32 s{sBASE}, s{sBASE}, s{sTMP2}",
             f"  s_max_i32 s{sBASE}, s{sBASE}, {round(ILO*64)}", f"  s_min_i32 s{sBASE}, s{sBASE}, {round(IHI*64)}",
             f"  s_mul_i32 s{sTMP}, s{sTMP}, {KP}", f"  s_add_i32 s{sD}, s{sTMP}, s{sBASE}",
             f"  v_mov_b32 v60, s{sD}", f"  v_mov_b32 v61, s{sBASE}", f"  ds_write_b64 v{VZ}, v[60:61] offset:{FL+8}", "  s_branch L_sel"]
        rare.extend(pad(R))
        for i in range(1, len(vers)):
            body += [f"  s_cmp_eq_u32 s{sD}, {i}", f"  s_cbranch_scc1 L_v{i}"]
        for i, d in enumerate(vers):
            assert d <= D
            ren = lambda s: re.sub(r"(L_r[sb]\d+)", lambda m: m.group(1) + f"_{i}", s)
            body.append(f"L_v{i}:")
            c = 0
            for ln in core:
                if ln == f"  s_waitcnt vmcnt({D-1})":
                    dd = math.floor(d) if c % 2 == 0 else math.ceil(d); c += 1
                    ln = f"  s_waitcnt vmcnt({dd-1})"
                body.append(ren(ln))
            assert c == 12
            body += [f"  s_cmp_lt_u32 s{sIDX}, {k0 + niter}", "  s_cbranch_scc1 L_disp"]
            if i < len(vers) - 1: body.append("  s_branch L_tail")
            rare.extend(ren(x) for x in rb)
        body.append("L_tail:")
    ki += 12*niter
    while ki < 768:
        wait(D - 1); issue(kv[ki]); ki += 1; drain()
    for n in range(D - 1, -1, -1):
        wait(n); drain()
    assert cptr[0] == len(S)
    stamp(4)
    A(f"  v_add_f32_dpp v{VLS}, v{VLS}, v{VLS} row_ror:8 row_mask:0xf bank_mask:0xf")
    A(f"  v_lshlrev_b32 v57, 8, v3"); A(f"  v_add_u32 v57, v56, v57")
    A(f"  v_lshl_add_u32 v58, v9, 1, v56")
    A(f"  v_lshrrev_b32 v59, 1, v0"); A(f"  s_lshl_b32 s{sTMP}, s{sW}, 5"); A(f"  v_add_u32 v59, s{sTMP}, v59")
    A(f"  v_mov_b32 v60, v{VNML}"); A(f"  v_mov_b32 v61, v{VLS}")
    A("  s_mov_b32 exec_lo, 0x00ff00ff"); A("  s_mov_b32 exec_hi, 0xff00ff00")
    A(f"  ds_write_b128 v57, {v4(ACC)} offset:{OP}"); A(f"  ds_write_b128 v57, {v4(ACC+4)} offset:{OP+256}"); A(f"  ds_write_b128 v58, {v4(ACC+8)} offset:{OP}")
    A("  s_mov_b32 exec_lo, 0x00010001"); A("  s_mov_b32 exec_hi, 0x00010001")
    A(f"  ds_write_b64 v59, v[60:61] offset:{ML}")
    A("  s_mov_b64 exec, -1")
    A(f"  v_mov_b32 v57, 0")
    A(f"  s_mul_i32 s{sTMP}, s{sW}, 192"); A(f"  v_lshlrev_b32 v58, 2, v0"); A(f"  v_add_u32 v58, s{sTMP}, v58")
    A("  s_waitcnt lgkmcnt(0)"); A("  s_barrier")
    stamp(1, 1)
    E = 112
    for k in range(8): A(f"  ds_read_b128 {v4(E+4*k)}, v57 offset:{ML+16*k}")
    for p in range(8): A(f"  ds_read_b32 v{E+32+p}, v58 offset:{OP+768*p}")
    OA = 64
    for r in range(20): A(f"  v_mov_b32 v{OA+r}, 0")
    A("  s_waitcnt lgkmcnt(0)" if stamps else "  s_waitcnt lgkmcnt(8)")
    A(f"  v_min_f32 v{VTMP}, v{E}, v{E+8}"); A(f"  v_min3_f32 v{VTMP}, v{E+16}, v{E+24}, v{VTMP}")
    for w in range(4):
        A(f"  v_sub_f32 v{E+8*w}, v{VTMP}, v{E+8*w}"); A(f"  v_exp_f32 v{E+8*w}, v{E+8*w}")
        A(f"  v_add_f32 v{E+8*w+1}, v{E+8*w+1}, v{E+8*w+3}"); A(f"  v_add_f32 v{E+8*w+5}, v{E+8*w+5}, v{E+8*w+7}"); A(f"  v_add_f32 v{E+8*w+1}, v{E+8*w+1}, v{E+8*w+5}")
    A(f"  v_mul_f32 v{VP}, v{E}, v{E+1}")
    for w in range(1, 4): A(f"  v_fma_f32 v{VP}, v{E+8*w}, v{E+8*w+1}, v{VP}")
    A(f"  v_rcp_f32 v{VP}, v{VP}")
    A("  s_waitcnt lgkmcnt(0)")
    for w in range(4): A(f"  v_add_f32 v{E+32+2*w}, v{E+32+2*w}, v{E+33+2*w}")
    A(f"  v_mul_f32 v{VS}, v{E}, v{E+32}")
    for w in range(1, 4): A(f"  v_fma_f32 v{VS}, v{E+8*w}, v{E+32+2*w}, v{VS}")
    A(f"  v_mul_f32 v{VS}, v{VS}, v{VP}")
    A(f"  v_cvt_pk_bf16_f32 v{VS}, v{VS}, v{VS}")
    A(f"  s_lshl_b32 s{sTMP}, s{sW}, 7"); A(f"  v_lshlrev_b32 v58, 1, v0"); A(f"  v_add_u32 v58, s{sTMP}, v58")
    A(f"  ds_write_b16 v58, v{VS} offset:{OB}")
    A(f"  v_mul_u32_u24 v59, 24, v4"); A(f"  v_add_u32 v59, s{sTMP}, v59")
    A("  s_waitcnt lgkmcnt(0)")
    for k in range(3): A(f"  ds_read_b64 v[{Q+2*k}:{Q+2*k+1}], v59 offset:{OB+8*k}")
    A(f"  v_lshlrev_b32 v57, 1, v1"); A(f"  v_bfe_u32 v58, v0, 4, 1"); A(f"  v_lshl_add_u32 v57, v58, 4, v57"); A(f"  v_lshl_add_u32 v57, v3, 8, v57")
    A(f"  s_mul_i32 s{sTMP}, s{sW}, 2560"); A(f"  v_add_u32 v57, s{sTMP}, v57")
    A("  s_waitcnt lgkmcnt(0)")
    stamp(2, 1)
    for rb in range(12):
        sel = SEL if rb % 2 == 0 else ACC
        A(f"  v_perm_b32 v{VP}, v{Q + rb//2}, v{Q + rb//2}, s{sPHI if rb % 2 else sPLO}")
        for k in range(4): A(f"  v_and_b32 v{sel+k}, v{VP}, v{MK+k}")
        for tp in range(5):
            A(f"  v_mfma_f32_16x16x32_bf16 {v4(OA+4*tp)}, {v4(sel)}, {v4(wo_reg(rb*5+tp),'a')}, {v4(OA+4*tp)}")
    A("  s_mov_b32 exec_hi, 0")
    for tp in range(5): A(f"  ds_write_b128 v57, {v4(OA+4*tp)} offset:{FP+512*tp}")
    A("  s_mov_b64 exec, -1")
    A(f"  s_lshl_b32 s{sTMP}, s{sW}, 10"); A(f"  v_lshlrev_b32 v58, 4, v0"); A(f"  v_add_u32 v58, s{sTMP}, v58")
    A("  s_waitcnt lgkmcnt(0)"); A("  s_barrier")
    stamp(3, 1)
    A(f"  s_cmp_eq_u32 s{sW}, 3"); A("  s_cbranch_scc1 L_skipst")
    for w in range(4): A(f"  ds_read_b128 {v4(E+4*w)}, v58 offset:{FP+2560*w}")
    A(f"  s_mul_i32 s{sTMP}, s{sH}, 2560")
    A(f"  v_cmp_gt_u32 vcc, 2560, v58")
    A("  s_waitcnt lgkmcnt(0)")
    for r in range(4):
        A(f"  v_add_f32 v{E+r}, v{E+r}, v{E+4+r}"); A(f"  v_add_f32 v{E+8+r}, v{E+8+r}, v{E+12+r}"); A(f"  v_add_f32 v{E+r}, v{E+r}, v{E+8+r}")
    A("  s_mov_b64 exec, vcc")
    A(f"  buffer_store_dwordx4 {v4(E)}, v58, {srd(SWS)}, s{sTMP} offen sc1")
    A("  s_mov_b64 exec, -1")
    A("  s_waitcnt vmcnt(0)")
    A("L_skipst:")
    stamp(5)
    A("  s_barrier")
    A(f"  v_mov_b32 v59, 0")
    A(f"  s_cmp_lg_u32 s{sW}, 0"); A("  s_cbranch_scc1 L_skipat")
    A(f"  s_lshl_b32 s{sTMP}, s{sB}, 5")
    A("  v_mov_b32 v60, 1")
    A("  s_mov_b64 exec, 1")
    A(f"  buffer_atomic_add v60, v59, {srd(SDBG)}, s{sTMP} offen sc0 sc1")
    A("  s_waitcnt vmcnt(0)")
    A(f"  ds_write_b32 v59, v60 offset:{FL}")
    A("  s_mov_b64 exec, -1")
    A("  s_waitcnt lgkmcnt(0)")
    A("L_skipat:")
    A("  s_barrier")
    A(f"  ds_read_b32 v60, v59 offset:{FL}")
    A("  s_waitcnt lgkmcnt(0)")
    A(f"  v_readfirstlane_b32 s{sTMP}, v60")
    A(f"  s_cmp_lg_u32 s{sTMP}, 31"); A("  s_cbranch_scc1 L_fin")
    A(f"  v_lshlrev_b32 v57, 4, v0")
    A(f"  s_mul_i32 s{sTMP}, s{sW}, 20480")
    for k in range(20):
        if k and k % 4 == 0: A(f"  s_add_u32 s{sTMP}, s{sTMP}, 4096")
        o = (k % 4)*1024
        A(f"  buffer_load_dwordx4 {v4(E+4*k)}, v57, {srd(SWS)}, s{sTMP} offen" + (f" offset:{o}" if o else "") + " sc1")
    A(f"  s_mul_i32 s{sTMP}, s{sW}, 5120"); A(f"  v_add_u32 v57, s{sTMP}, v57")
    for k in range(5, 20):
        A(f"  s_waitcnt vmcnt({19-k})")
        for r in range(4): A(f"  v_add_f32 v{E+4*(k%5)+r}, v{E+4*(k%5)+r}, v{E+4*k+r}")
    for k in range(5): A(f"  ds_write_b128 v57, {v4(E+4*k)} offset:{RP+1024*k}")
    A("  s_waitcnt lgkmcnt(0)"); A("  s_barrier")
    A(f"  s_cmp_eq_u32 s{sW}, 3"); A("  s_cbranch_scc1 L_fin")
    for p in range(8): A(f"  ds_read_b128 {v4(E+4*p)}, v58 offset:{RP+2560*p}")
    A(f"  v_lshrrev_b32 v58, 1, v58")
    A("  s_waitcnt lgkmcnt(0)")
    for r in range(4):
        for p in range(1, 8): A(f"  v_add_f32 v{E+r}, v{E+r}, v{E+4*p+r}")
    A(f"  v_cvt_pk_bf16_f32 v{E}, v{E}, v{E+1}"); A(f"  v_cvt_pk_bf16_f32 v{E+1}, v{E+2}, v{E+3}")
    A(f"  buffer_store_dwordx2 v[{E}:{E+1}], v58, {srd(SOUT)}, 0 offen")
    A("  s_waitcnt vmcnt(0)")
    A("L_fin:")
    if stamps:
        stamp(6)
        A("  s_getreg_b32 s94, hwreg(HW_REG_XCC_ID)"); A("  s_and_b32 s94, s94, 7"); A(f"  s_lshl_b32 s{sBH}, s{sBH}, 8"); A(f"  s_or_b32 s94, s94, s{sBH}")
        A(f"  s_lshl_b32 s{sFB}, s{sFB}, 24"); A(f"  s_or_b32 s94, s94, s{sFB}")
        A("  s_waitcnt lgkmcnt(0)")
        A(f"  s_lshl_b32 s{sTMP}, s2, 2"); A(f"  s_add_u32 s{sTMP}, s{sTMP}, s{sW}"); A(f"  s_lshl_b32 s{sTMP}, s{sTMP}, 5")
        A(f"  s_mov_b32 s{SWS}, s54"); A(f"  s_mov_b32 s{SWS+1}, s55"); A(f"  s_mov_b32 s{SWS+2}, 0x100000"); A(f"  s_mov_b32 s{SWS+3}, 0x20000")
        for k in range(8): A(f"  v_mov_b32 v{4+k}, s{80+2*k}")
        A("  v_mov_b32 v3, 0")
        A("  s_mov_b64 exec, 1"); A(f"  buffer_store_dwordx4 v[4:7], v3, {srd(SWS)}, s{sTMP} offen"); A(f"  buffer_store_dwordx4 v[8:11], v3, {srd(SWS)}, s{sTMP} offen offset:16"); A("  s_waitcnt vmcnt(0)")
    A("L_end:"); A("  s_endpgm")
    post = L
    allp = pad(pre + body + post)
    if not vers:
        i0 = allp.index("L_loop:"); i1 = allp.index("  s_cbranch_scc1 L_loop")
        check_loop(allp[i0:i1+1])
    T = [HDR.rstrip("\n"), f"; @launch grid=(256,1,1) block=(256,1,1) lds={LDS}",
         '.amdgcn_target "amdgcn-amd-amdhsa--gfx950"', ".text", f".globl {NAME}", ".p2align 8", f".type {NAME},@function", f"{NAME}:"]
    T += allp + rare
    T += ['.section .rodata,"a"', ".p2align 6", f".amdhsa_kernel {NAME}", "  .amdhsa_next_free_vgpr 512", "  .amdhsa_next_free_sgpr 102",
          "  .amdhsa_accum_offset 256", "  .amdhsa_group_segment_fixed_size 0", "  .amdhsa_kernarg_size 64", "  .amdhsa_user_sgpr_count 2",
          "  .amdhsa_user_sgpr_kernarg_segment_ptr 1", "  .amdhsa_system_sgpr_workgroup_id_x 1", ".end_amdhsa_kernel"]
    open(fn, "w").write("\n".join(T) + "\n")
    sys.stderr.write(f"{fn}: qpos={qpos} n0={n0} k0={k0} niter={niter} lines={len(T)}\n")
    return fn
if __name__ == "__main__":
    from build import build
    import genk, genk2
    os.makedirs("k", exist_ok=True)
    cfgs = eval(open(sys.argv[1]).read())
    outs = []
    for n, kw in cfgs.items():
        kw = dict(kw); g = [gen, genk.gen, genk2.gen][int(kw.pop("old", 0))]
        g(f"k/{n}.s", **kw); build(f"k/{n}.s", quiet=True); outs.append(f"k/{n}.co")
    print(" ".join(outs))
```

```python
import sys, os, re, math, struct
from hz import pad, check_loop
NAME = "standalone__gqa_block_cached__decode_kernel"
HDR = open("standalone__gqa_block_cached__decode.s.ref").read().split("; Override launch")[0]
def f2u(f): return struct.unpack("<I", struct.pack("<f", f))[0]
LOG2E = 1.4426950408889634
SCALE = 192 ** -0.5
def mulshift(div, maxv):
    for sh in range(4, 24):
        m = (1 << sh) // div + 1
        if m * maxv < (1 << 24) * 256 and m < (1 << 24) and all(((v * m) >> sh) == v // div for v in range(maxv + 1)):
            if m * maxv < (1 << 32): return m, sh
    raise Exception("no mulshift")
QB = 0
OP = 512
ML = OP + 6144
OB = ML + 128
FL = OB + 512
PP = FL + 288
FP = PP + 8192
RP = FP + 10240
WT = FP
LDS = WT + 40960
WS_PART = 0x100000; WS_TICK = 0x200000; WS_QX = 0xC00000; WS_CNT = 0xE00000
TKA = [46,39,32,26,20,16,12,9,7,5,3]

def gen(fn, D=8, DA=8, DT=8, R1=63, R2=3, stamps=False, kvflags="nt", wo_per_step=3, NBIG=10, wflags="nt", SS=0,
        vers=(4.5,5,5.5,6,6.5,7,8), GN=8, KP=16, KI=2, BASE=3.0, ILO=1.0, IHI=6.0, LST=4352, PB=0.7, KW=16, TK=TKA,
        F0=6, POLL=36, CS=4352, BR=2, NSPIN=64, FORCEFB=False, WO0=None, WE=2, WR=2, PW=0, CW=1, PD=2, QD=3, BURST=0, DBG='', wqflags='nt'):
    L = []; A = L.append
    rare = []
    VA0, VA2, VL0, VL2, VT = 10, 11, 12, 13, 14
    MK = 16; Q = 20; ACC = 32; SEL = 44
    VS, VTMP, VM, VNML, VLS, VP, VWQ, VWO = 48, 49, 50, 51, 52, 53, 54, 55
    RK, RV, BK = 64, 88, 112
    VPL, VPS, VPG, VZ = 15, 62, 63, 5
    VB0, VPO = 60, 61
    QA = 64
    XA = 232; QD4 = ACC
    SK, SV, SWQ, SWO, SX, SWS, SOUT, SDBG = 8, 12, 16, 20, 24, 28, 32, 36
    SPG = 96; SQX = 4; SCN = 92 if not stamps else None
    sW, sB, sH, sBH, sOFF, sT, sIDX, sL0, sL1, sLOG, sSC, sPLO, sPHI, sTMP, sTMP2, sWOFF, sHI16 = 56, 57, 58, 59, 60, 61, 62, 63, 64, 65, 66, 67, 68, 69, 70, 71, 72
    sD = 73; sFB = 78; sBASE = 79; sCO = 3; sQO = 95
    def srd(n): return f"s[{n}:{n+3}]"
    def v4(n, p="v"): return f"{p}[{n}:{n+3}]"
    def v16(n): return f"v[{n}:{n+15}]"
    def stamp(k, ss=0):
        if SS and ss == 0 and k in (1, 2, 3): return
        if ss and ss != SS: return
        if stamps: A(f"  s_memrealtime s[{80+2*k}:{81+2*k}]")

    A(f"  s_cmp_ge_u32 s2, 256"); A("  s_cbranch_scc1 L_end")
    A("  s_load_dwordx16 s[40:55], s[0:1], 0")
    stamp(0)
    A("  v_lshrrev_b32 v1, 6, v0"); A(f"  v_readfirstlane_b32 s{sW}, v1")
    A("  v_and_b32 v0, 63, v0")
    A(f"  s_and_b32 s{sH}, s2, 7"); A(f"  s_lshl_b32 s{sH}, s{sH}, 2"); A(f"  s_bfe_u32 s{sTMP}, s2, {3 | (2 << 16)}"); A(f"  s_add_u32 s{sH}, s{sH}, s{sTMP}")
    A(f"  s_lshr_b32 s{sB}, s2, 5")
    A(f"  s_lshl_b32 s{sBH}, s{sB}, 5"); A(f"  s_add_u32 s{sBH}, s{sBH}, s{sH}")
    A("  v_and_b32 v1, 7, v0"); A("  v_lshlrev_b32 v1, 4, v1"); A("  v_lshrrev_b32 v2, 3, v0"); A("  v_and_b32 v3, 1, v2"); A("  v_lshrrev_b32 v4, 4, v0")
    A("  v_mul_u32_u24 v56, 80, v1"); A("  v_lshl_add_u32 v56, v4, 3, v56")
    A(f"  v_mul_u32_u24 v{VWQ}, 12288, v2"); A(f"  v_add_u32 v{VWQ}, v{VWQ}, v1")
    A(f"  v_mov_b32 v{VZ}, 0")
    A("  v_add_u32 v6, 1, v2"); A("  v_mul_u32_u24 v6, 11, v6"); A("  v_lshrrev_b32 v6, 5, v6"); A("  v_mul_u32_u24 v6, 84, v6")
    A("  v_mul_u32_u24 v7, 85, v2"); A("  v_add_u32 v7, 84, v7"); A("  v_sub_u32 v7, v7, v6"); A("  v_mul_u32_u24 v7, 384, v7"); A("  v_add_u32 v7, v7, v1")
    A("  v_lshlrev_b32 v8, 7, v3")
    A("  v_lshlrev_b32 v9, 8, v3"); A("  v_sub_u32 v9, 256, v9")
    A(f"  v_add_u32 v{VL0}, v7, v8"); A(f"  v_add_u32 v{VL2}, v7, v9")
    A(f"  s_mul_i32 s{sL0}, s{sW}, {2*196608}"); A(f"  s_add_u32 s{sL1}, s{sL0}, 196608")
    A(f"  s_min_u32 s{sOFF}, s{sB}, 5"); A(f"  s_cmp_ge_u32 s{sOFF}, 3"); A(f"  s_cselect_b32 s{sT}, 4, 0"); A(f"  s_cselect_b32 s{sTMP}, 3, 0")
    A(f"  s_sub_u32 s{sOFF}, s{sOFF}, s{sTMP}"); A(f"  s_add_u32 s{sT}, s{sT}, s{sW}")
    A(f"  s_mul_i32 s{sTMP}, s{sT}, 160")
    A(f"  s_mul_i32 s{sTMP2}, s{sT}, {80*12288}"); A(f"  s_lshl_b32 s{sOFF}, s{sOFF}, 7"); A(f"  s_add_u32 s{sTMP2}, s{sTMP2}, s{sOFF}")
    A(f"  s_mul_i32 s{sOFF}, s{sH}, 384"); A(f"  s_add_u32 s{sTMP2}, s{sTMP2}, s{sOFF}")
    A(f"  s_mul_i32 s{sOFF}, s{sBH}, 1572864")
    A(f"  s_lshl_b32 s{sCO}, s{sH}, 3"); A(f"  s_add_u32 s{sCO}, s{sCO}, s{sB}"); A(f"  s_mul_i32 s{sCO}, s{sCO}, {CS}"); A(f"  s_add_u32 s{sCO}, s{sCO}, {WS_CNT - WS_QX}")
    A(f"  s_mov_b32 s{SX+3}, 0x20000"); A(f"  s_mov_b32 s{SWQ+3}, 0x20000"); A(f"  s_mov_b32 s{SQX+3}, 0x20000"); A(f"  s_mov_b32 s{SK+3}, 0x20000"); A(f"  s_mov_b32 s{SV+3}, 0x20000")
    A(f"  s_sub_u32 s{SX+2}, 10240, s{sTMP}"); A(f"  s_cmp_lt_u32 s{sB}, 6"); A(f"  s_cselect_b32 s{SWQ+2}, {79*12288+128}, 0"); A(f"  s_mov_b32 s{SQX+2}, {WS_CNT - WS_QX + 256*CS}")
    A(f"  s_mov_b32 s{SK+2}, 1572864"); A(f"  s_mov_b32 s{SV+2}, 1572864")
    A(f"  s_cmp_eq_u32 s{sW}, {CW}"); A(f"  s_cselect_b32 s76, -1, 0"); A(f"  s_cselect_b32 s77, 0xffff, 0")
    A("  s_waitcnt lgkmcnt(0)")
    A(f"  s_add_u32 s{SX}, s40, s{sTMP}"); A(f"  s_addc_u32 s{SX+1}, s41, 0")
    A(f"  s_add_u32 s{SWQ}, s46, s{sTMP2}"); A(f"  s_addc_u32 s{SWQ+1}, s47, 0")
    A(f"  s_add_u32 s{SQX}, s54, {WS_QX}"); A(f"  s_addc_u32 s{SQX+1}, s55, 0")
    A(f"  s_add_u32 s{SK}, s42, s{sOFF}"); A(f"  s_addc_u32 s{SK+1}, s43, 0")
    A(f"  s_add_u32 s{SV}, s44, s{sOFF}"); A(f"  s_addc_u32 s{SV+1}, s45, 0")

    def setup2():
        A(f"  s_mul_i32 s{sTMP}, s{sH}, {192*1280}"); A(f"  s_mul_i32 s{sTMP2}, s{sW}, {48*1280}"); A(f"  s_add_u32 s{sTMP}, s{sTMP}, s{sTMP2}")
        A(f"  s_add_u32 s{SWO}, s48, s{sTMP}"); A(f"  s_addc_u32 s{SWO+1}, s49, 0"); A(f"  s_mov_b32 s{SWO+2}, {48*1280}"); A(f"  s_mov_b32 s{SWO+3}, 0x20000")
        A(f"  s_mul_i32 s{sTMP}, s{sB}, {32*2560}"); A(f"  s_add_u32 s{sTMP}, s{sTMP}, {WS_PART}")
        A(f"  s_add_u32 s{SWS}, s54, s{sTMP}"); A(f"  s_addc_u32 s{SWS+1}, s55, 0"); A(f"  s_mov_b32 s{SWS+2}, {32*2560}"); A(f"  s_mov_b32 s{SWS+3}, 0x20000")
        A(f"  s_mul_i32 s{sTMP}, s{sB}, 1280")
        A(f"  s_add_u32 s{SOUT}, s50, s{sTMP}"); A(f"  s_addc_u32 s{SOUT+1}, s51, 0"); A(f"  s_mov_b32 s{SOUT+2}, 1280"); A(f"  s_mov_b32 s{SOUT+3}, 0x20000")
        A(f"  s_mov_b32 s{SDBG}, s52"); A(f"  s_mov_b32 s{SDBG+1}, s53"); A(f"  s_mov_b32 s{SDBG+2}, 256"); A(f"  s_mov_b32 s{SDBG+3}, 0x20000")
        A(f"  s_mov_b32 s{sLOG}, {hex(f2u(LOG2E))}"); A(f"  s_mov_b32 s{sSC}, {hex(f2u(SCALE))}")
        A(f"  s_mov_b32 s{sPLO}, 0x01000100"); A(f"  s_mov_b32 s{sPHI}, 0x03020302"); A(f"  s_mov_b32 s{sHI16}, 0xffff0000")
        A(f"  s_mov_b32 s{sFB}, 0")
        if stamps: A(f"  s_mov_b32 s{sBH}, 0")
        A("  v_mul_u32_u24 v6, 384, v4"); A(f"  v_mul_u32_u24 v7, {85*384}, v3"); A("  v_add_u32 v6, v6, v7"); A("  v_add_u32 v6, v6, v1")
        A(f"  v_add_u32 v{VA0}, v6, v8"); A(f"  v_add_u32 v{VA2}, v6, v9")
        A(f"  v_mul_u32_u24 v{VWO}, {12*1280}, v4"); A(f"  v_add_u32 v{VWO}, v{VWO}, v8"); A(f"  v_add_u32 v{VWO}, v{VWO}, v1")
        A("  v_and_b32 v6, 1, v0"); A("  v_lshlrev_b32 v6, 4, v6"); A("  v_mov_b32 v7, 0xffff"); A("  v_lshlrev_b32 v7, v6, v7")
        A("  v_bfe_u32 v6, v0, 1, 2")
        for k in range(4):
            A(f"  v_cmp_eq_u32 vcc, {k}, v6"); A(f"  v_cndmask_b32 v{MK+k}, 0, v7, vcc")
        A(f"  s_bfe_u32 s{sTMP}, s2, {3 | (3 << 16)}"); A(f"  s_mul_i32 s{sTMP}, s{sTMP}, {R1}")
        A(f"  s_bfe_u32 s{sTMP2}, s2, {6 | (2 << 16)}"); A(f"  s_mul_i32 s{sTMP2}, s{sTMP2}, {R2}"); A(f"  s_add_u32 s{sTMP}, s{sTMP}, s{sTMP2}")
        A(f"  s_add_u32 s{sTMP}, s{sTMP}, s{sW}")
        assert 7*R1 + 3*R2 < 504
        m21, s21 = mulshift(21, 1100); m3, s3 = mulshift(3, 60)
        for half in range(2):
            A("  v_lshlrev_b32 v6, 1, v0")
            if half: A("  v_add_u32 v6, 1, v6")
            A("  v_lshlrev_b32 v6, 2, v6")
            A(f"  v_add_u32 v6, s{sTMP}, v6")
            A("  v_subrev_u32 v7, 504, v6"); A("  v_cmp_le_u32 vcc, 504, v6"); A("  v_cndmask_b32 v6, v6, v7, vcc")
            A(f"  v_mul_u32_u24 v7, {m21}, v6"); A(f"  v_lshrrev_b32 v7, {s21}, v7")
            A(f"  v_mul_u32_u24 v57, {m3}, v7"); A(f"  v_lshrrev_b32 v57, {s3}, v57")
            A("  v_mul_u32_u24 v7, 87, v7"); A("  v_sub_u32 v7, v7, v57"); A("  v_lshl_add_u32 v7, v6, 2, v7")
            if half == 0: A(f"  v_and_b32 v{VT}, 0xffff, v7")
            else: A(f"  v_lshl_or_b32 v{VT}, v7, 16, v{VT}")
        if vers:
            lg = GN.bit_length() - 1
            A(f"  s_lshr_b32 s101, s2, {lg}")
            A(f"  s_mul_i32 s{sTMP2}, s101, {64*LST + 256}")
            A(f"  s_add_u32 s{SPG}, s54, {WS_TICK}"); A(f"  s_addc_u32 s{SPG+1}, s55, 0"); A(f"  s_mov_b32 s{SPG+2}, {(256//GN)*(64*LST+256)}"); A(f"  s_mov_b32 s{SPG+3}, 0x20000")
            A(f"  s_getreg_b32 s{sBASE}, hwreg(HW_REG_XCC_ID)"); A(f"  s_and_b32 s{sBASE}, s{sBASE}, 1")
            A(f"  s_mul_i32 s{sBASE}, s{sBASE}, {round(2*PB*64)}"); A(f"  s_add_u32 s{sBASE}, s{sBASE}, {round((BASE+0.5-PB)*64)}")
            A(f"  v_mov_b32 v58, s{sBASE}"); A(f"  v_mov_b32 v59, s{sBASE}"); A(f"  ds_write_b64 v{VZ}, v[58:59] offset:{FL+8}")
            A(f"  ds_write_b32 v{VZ}, v{VZ} offset:{FL+16}")
            A(f"  s_lshl_b32 s{sTMP}, s2, 2"); A(f"  s_add_u32 s{sTMP}, s{sTMP}, s{sW}")
            A(f"  v_xor_b32 v6, s{sTMP}, v0"); A(f"  v_and_b32 v6, {min(4*GN,64)-1}, v6"); A(f"  v_cmp_eq_u32 vcc, 0, v6")
            A(f"  v_mul_u32_u24 v6, {LST}, v0")
            A(f"  s_mov_b64 exec, vcc")
            if 'z' not in DBG: A(f"  buffer_store_dword v{VZ}, v6, {srd(SPG)}, s{sTMP2} offen sc1")
            A(f"  s_mov_b64 exec, -1")
            A(f"  s_and_b32 s100, s2, {GN-1}")
        A(f"  v_mov_b32 v{VM}, 0xff800000"); A(f"  v_mov_b32 v{VNML}, 0x7f800000"); A(f"  v_mov_b32 v{VLS}, 0")

    class Ld: pass
    def mk(kind, step, t, dstp, dst, text, pre=(), post=()):
        l = Ld(); l.kind, l.step, l.t, l.dstp, l.dst, l.text, l.pre, l.post = kind, step, t, dstp, dst, text, list(pre), list(post); l.done = False; return l
    def kv_load(n, isv, t, loop=False):
        if n < NBIG: p, d = ("a", 12*n + 4*t) if isv else ("v", BK + 12*n + 4*t)
        else: p, d = "v", (RV if isv else RK) + 12*(n % 2) + 4*t
        pre = []
        if n < 2:
            so = f"s{sL0 + n}"; va = VL2 if t == 2 else VL0
        else:
            so = f"s{sOFF}"; va = VA2 if t == 2 else VA0
            if not isv and t == 0:
                if n % 2 == 0: pre += [f"  s_and_b32 s{sOFF}, s{sT}, 0xffff", f"  s_mul_i32 s{sOFF}, s{sOFF}, 384"]
                else: pre += [f"  s_lshr_b32 s{sOFF}, s{sT}, 16", f"  s_mul_i32 s{sOFF}, s{sOFF}, 384"]
        if n % 2 == 1 and not isv and t == 1 and n + 1 < 128:
            k = (n + 1 - 2) // 2
            if loop: pre += [f"  v_readlane_b32 s{sT}, v{VT}, s{sIDX}", f"  s_add_u32 s{sIDX}, s{sIDX}, 1"]
            else: pre += [f"  v_readlane_b32 s{sT}, v{VT}, {k}"]
        off = f" offset:128" if t == 1 else ""
        txt = f"  buffer_load_dwordx4 {v4(d,p)}, v{va}, {srd(SV if isv else SK)}, {so} offen{off} {kvflags}"
        return mk("v" if isv else "k", n, t, p, d, txt, pre)
    def kv_step(n, loop=False): return [kv_load(n, isv, t, loop) for isv in (0, 1) for t in range(3)]
    def wq_load(i):
        d = 120 + 4*i
        pre = [f"  s_mov_b32 s{sWOFF}, {i*8*12288}"] if i else []
        so = f"s{sWOFF}" if i else "0"
        return mk("wq", i, 0, "a", d, f"  buffer_load_dwordx4 {v4(d,'a')}, v{VWQ}, {srd(SWQ)}, {so} offen {wqflags}", pre)
    def wo_reg(i): return (120 + 4*((i + 10) % 30)) if i < 30 else 4*(i - 30)
    def wo_load(i):
        rb, tp = divmod(i, 5); d = wo_reg(i)
        pre = [f"  s_mov_b32 s{sWOFF}, {(rb//3)*3840}"] if i % 15 == 0 else []
        o = (rb % 3)*1280 + 256*tp
        off = f" offset:{o}" if o else ""
        return mk("wo", rb, tp, "a", d, f"  buffer_load_dwordx4 {v4(d,'a')}, v{VWO}, {srd(SWO)}, s{sWOFF} offen{off} {wflags}", pre)
    def selector(src, sel=SEL):
        for k in range(4): A(f"  v_and_b32 v{sel+k}, v{src}, v{MK+k}")
    uid = [0]
    def xreg(s, i): return (Q + 4*s + i//2) if i < 8 else (Q + 8 + s)
    def consume(l):
        l.done = True
        if l.kind == "wq":
            A(f"  ds_write_b128 v56, {v4(l.dst, l.dstp)} offset:{1024*l.step}")
        elif l.kind == "k":
            for r in range(4):
                c = "0" if (l.t == 0 and r == 0) else f"v{VS}"
                A(f"  v_dot2_f32_bf16 v{VS}, v{l.dst+r}, v{Q+4*l.t+r}, {c}")
            if l.t == 2:
                A(f"  v_add_f32_dpp v{VS}, v{VS}, v{VS} quad_perm:[1,0,3,2] row_mask:0xf bank_mask:0xf")
                A(f"  v_add_f32_dpp v{VS}, v{VS}, v{VS} quad_perm:[2,3,0,1] row_mask:0xf bank_mask:0xf")
                A(f"  v_add_f32_dpp v{VS}, v{VS}, v{VS} row_half_mirror row_mask:0xf bank_mask:0xf")
                A(f"  v_cvt_pk_bf16_f32 v{VS}, v{VS}, v{VS}"); A(f"  v_and_b32 v{VS}, s{sHI16}, v{VS}")
                A(f"  v_mul_f32 v{VS}, s{sSC}, v{VS}")
                A(f"  v_cvt_pk_bf16_f32 v{VS}, v{VS}, v{VS}"); A(f"  v_and_b32 v{VS}, s{sHI16}, v{VS}")
                u = uid[0]; uid[0] += 1
                A(f"  v_cmp_gt_f32 vcc, v{VS}, v{VM}"); A(f"  s_cbranch_vccnz L_rs{u}"); A(f"L_rb{u}:")
                A(f"  v_fma_f32 v{VP}, v{VS}, s{sLOG}, v{VNML}"); A(f"  v_exp_f32 v{VP}, v{VP}")
                A(f"  v_cvt_pk_bf16_f32 v{VTMP}, v{VP}, v{VP}"); A(f"  v_add_f32 v{VLS}, v{VLS}, v{VP}")
                selector(VTMP)
                R = [f"L_rs{u}:", "  s_nop 7",
                     f"  v_max_f32_dpp v{VTMP}, v{VS}, v{VS} row_ror:8 row_mask:0xf bank_mask:0xf",
                     f"  v_readlane_b32 s74, v{VTMP}, 0", f"  v_readlane_b32 s75, v{VTMP}, 16", f"  v_readlane_b32 s76, v{VTMP}, 32", f"  v_readlane_b32 s77, v{VTMP}, 48",
                     f"  v_max_f32 v{VM}, s74, v{VM}", f"  v_max_f32 v{VM}, s75, v{VM}", f"  v_max_f32 v{VM}, s76, v{VM}", f"  v_max_f32 v{VM}, s77, v{VM}",
                     f"  v_mul_f32 v{VTMP}, s{sLOG}, v{VM}", f"  v_sub_f32 v{VP}, 0, v{VNML}",
                     f"  v_sub_f32 v{VP}, v{VP}, v{VTMP}", f"  v_exp_f32 v{VP}, v{VP}",
                     f"  v_sub_f32 v{VNML}, 0, v{VTMP}", f"  v_mul_f32 v{VLS}, v{VLS}, v{VP}"]
                R += [f"  v_mul_f32 v{ACC+r}, v{ACC+r}, v{VP}" for r in range(12)]
                R += [f"  s_branch L_rb{u}"]
                rare.extend(pad(R))
        elif l.kind == "v":
            A(f"  v_mfma_f32_16x16x32_bf16 {v4(ACC+4*l.t)}, {v4(SEL)}, {v4(l.dst,l.dstp)}, {v4(ACC+4*l.t)}")

    S = []; st = dict(comp=-1, mid=False, credit=0); owner = {}
    def wait(n):
        c = len(S) - 1 - n
        if c > st["comp"]:
            A(f"  s_waitcnt vmcnt({n})"); st["comp"] = c
    def issue(l):
        key = (l.dstp, l.dst)
        if key in owner: assert owner[key].done, (l.kind, l.step, l.t, owner[key].kind, owner[key].step)
        owner[key] = l
        for p in l.pre: A(p)
        A(l.text); l.pos = len(S); S.append(l)
        for p in l.post: A(p)
    cptr = [0]; qready = [False]; backlog = []; wqq = []
    def try_backlog():
        while backlog and qready[0] and not st["mid"] and st["credit"] >= 6 and hasattr(backlog[0][-1], "pos") and backlog[0][-1].pos <= st["comp"]:
            for x in backlog.pop(0): consume(x)
            st["credit"] -= 6
    def drain():
        if qready[0]: st["credit"] += BR
        while cptr[0] <= st["comp"]:
            l = S[cptr[0]]
            if l.kind in ("k", "v"):
                if l.step < NBIG: pass
                elif not qready[0]: break
                else:
                    consume(l); st["mid"] = not (l.kind == "v" and l.t == 2)
                    try_backlog()
            elif l.kind == "wq": wqq.append(l)
            elif l.kind == "x": l.done = True
            cptr[0] += 1
        try_backlog()

    kv = []
    for n in range(128): kv += kv_step(n)
    for n in range(NBIG): backlog.append(kv[6*n:6*n+6])
    K = dict(i=0, wi=0, cnt=0, wo=False)
    def pump(d):
        if not qready[0]: assert K["i"] < 6*NBIG + 12
        wait(d - 1); issue(kv[K["i"]]); K["i"] += 1; drain()
        if K["wo"]:
            K["cnt"] += 1
            while K["wi"] < 60 and K["wi"] < K["cnt"]*wo_per_step//6:
                l = wo_load(K["wi"]); key = (l.dstp, l.dst)
                if K["wi"] >= 30 and key not in owner: break
                if key in owner and not owner[key].done: break
                wait(d - 1); issue(l); l.done = True; K["wi"] += 1; drain()
    for k in range(5):
        issue(mk("x", 0, 0, "v", XA+2*k, f"  buffer_load_dwordx2 v[{XA+2*k}:{XA+2*k+1}], v56, {srd(SX)}, 0 offen" + (f" offset:{32*k}" if k else "")))
    issue(mk("x", 0, 0, "v", VB0, f"  buffer_load_dword v{VB0}, v{VZ}, {srd(SQX)}, s{sCO} offen sc1", ["  s_mov_b64 exec, s[76:77]"]))
    A("  s_mov_b64 exec, -1")
    for i in range(10): issue(wq_load(i))
    lastwq = len(S) - 1
    for i in range(F0): issue(kv[i])
    K["i"] = F0
    A(f"  ds_write_b32 v{VZ}, v{VZ} offset:{FL+4}"); A(f"  ds_write_b32 v{VZ}, v{VZ} offset:{FL+276}")
    setup2()
    A("  s_waitcnt lgkmcnt(0)"); A("  s_barrier")
    A(f"  v_lshlrev_b32 v58, 4, v0"); A(f"  s_mul_i32 s{sTMP}, s{sW}, 10240"); A(f"  s_add_u32 s{sTMP}, s{sTMP}, {WT}"); A(f"  v_add_u32 v56, s{sTMP}, v58")
    A(f"  v_lshrrev_b32 v57, 2, v0"); A(f"  v_lshlrev_b32 v57, 7, v57"); A(f"  v_and_b32 v6, 3, v0"); A(f"  v_lshl_add_u32 v57, v6, 3, v57"); A(f"  v_add_u32 v57, s{sTMP}, v57")
    A(f"  v_and_b32 v6, 15, v0"); A(f"  v_lshlrev_b32 v6, 2, v6"); A(f"  v_lshl_add_u32 v6, v4, 10, v6"); A(f"  s_lshl_b32 s{sTMP}, s{sW}, 11"); A(f"  v_add_u32 v6, s{sTMP}, v6")
    n = len(S) - 1 - 6
    while n >= DA:
        n -= 1; wait(n); drain()
        while wqq: consume(wqq.pop(0))
    while st["comp"] < lastwq or wqq:
        pump(DA)
        while wqq: consume(wqq.pop(0))
    for ks in range(5):
        for t in range(4):
            r = QA + 8*ks + 2*t
            A(f"  ds_read_b64_tr_b16 v[{r}:{r+1}], v57 offset:{2048*ks + 32*t}")
    pump(DA)
    A("  s_waitcnt lgkmcnt(0)")
    for ks in range(5):
        for t in range(4):
            c = v4(QD4 + 4*t) if ks else "0"; r = QA + 8*ks + 2*t
            A(f"  v_mfma_f32_16x16x16_bf16 {v4(QD4 + 4*t)}, v[{XA+2*ks}:{XA+2*ks+1}], v[{r}:{r+1}], {c}")
    pump(DA)
    A("  s_mov_b32 exec_hi, 0")
    for t in range(4):
        for r in range(4): A(f"  ds_write_b32 v6, v{QD4 + 4*t + r} offset:{PP + 256*r + 64*t}")
    A("  s_mov_b64 exec, 1"); A(f"  v_mov_b32 v59, 1")
    A("  s_waitcnt lgkmcnt(0)")
    A(f"  ds_add_u32 v{VZ}, v59 offset:{FL+4}")
    A("  s_mov_b64 exec, -1")
    for _ in range(PD): pump(DA)
    for i in range(BURST): pump(DA + i + 1)
    A(f"  s_mul_i32 s{sQO}, s{sH}, 12288")
    A(f"  s_cmp_lg_u32 s{sW}, {PW}"); A("  s_cbranch_scc1 L_nopub")
    A(f"  s_cmp_ge_u32 s{sB}, 6"); A("  s_cbranch_scc1 L_nopub")
    A(f"  s_lshl_b32 s{sTMP}, s{sB}, 8"); A(f"  s_add_u32 s74, s{sTMP}, s{sQO}"); A(f"  s_add_u32 s75, s74, 6144")
    A(f"  v_mul_u32_u24 v6, 1536, v4"); A(f"  v_and_b32 v7, 0xf0, v58"); A(f"  v_add_u32 v6, v6, v7")
    A(f"  v_mul_u32_u24 v57, {CS}, v0"); A(f"  s_mul_i32 s{sTMP}, s{sB}, {CS}"); A(f"  s_sub_u32 s{sTMP2}, s{sCO}, s{sTMP}")
    A("L_pw:"); A(f"  ds_read_b32 v59, v{VZ} offset:{FL+4}"); A("  s_waitcnt lgkmcnt(0)"); A(f"  v_readfirstlane_b32 s{sTMP}, v59")
    A(f"  s_cmp_lg_u32 s{sTMP}, 4"); A("  s_cbranch_scc1 L_pw")
    for u in range(2):
        for p in range(4): A(f"  ds_read_b128 {v4(QA + 16*u + 4*p)}, v58 offset:{PP + 2048*p + 1024*u}")
    A(f"  v_mov_b32 v59, 1")
    A(f"  s_waitcnt lgkmcnt(0)")
    for u in range(2):
        b = QA + 16*u
        for r in range(4):
            A(f"  v_add_f32 v{b+r}, v{b+r}, v{b+4+r}"); A(f"  v_add_f32 v{b+8+r}, v{b+8+r}, v{b+12+r}"); A(f"  v_add_f32 v{b+r}, v{b+r}, v{b+8+r}")
        if 's' not in DBG: A(f"  buffer_store_dwordx4 {v4(b)}, v6, {srd(SQX)}, s{74+u} offen sc1")
    if 'w' not in DBG: A("  s_waitcnt vmcnt(0)")
    A("  s_mov_b64 exec, 0xff")
    if 'a' not in DBG: A(f"  buffer_atomic_add v59, v57, {srd(SQX)}, s{sTMP2} offen sc1")
    A("  s_mov_b64 exec, -1")
    A("L_nopub:")
    stamp(1)
    if WO0 is not None:
        while K["i"] < WO0: pump(DA)
        K["wo"] = True
    while K["i"] < POLL: pump(DA)
    polltxt = f"  buffer_load_dword v{VPO}, v{VZ}, {srd(SQX)}, s{sCO} offen sc1"
    issue(mk("x", 0, 0, "v", VPO, polltxt, ["  s_mov_b64 exec, s[76:77]"], ["  s_mov_b64 exec, -1"])); p = len(S) - 1
    while st["comp"] < p: pump(DA)
    chk = [f"  v_sub_u32 v{VPO}, v{VPO}, v{VB0}", f"  v_readfirstlane_b32 s{sTMP}, v{VPO}", f"  s_cmp_eq_u32 s{sTMP}, {7 if FORCEFB else (0 if 'a' in DBG else 6)}"]
    A(f"  s_cmp_lg_u32 s{sW}, {CW}"); A("  s_cbranch_scc1 L_pok")
    for c in chk: A(c)
    A("  s_cbranch_scc0 L_spin"); A("L_pok:")
    FA, FD = 232, 248
    R = ["L_spin:", f"  s_mov_b32 s{sFB}, {NSPIN}", "L_spin1:", polltxt, "  s_waitcnt vmcnt(0)"] + chk + [
         "  s_cbranch_scc1 L_spin2", f"  s_sub_u32 s{sFB}, s{sFB}, 1", f"  s_cmp_lg_u32 s{sFB}, 0", "  s_cbranch_scc1 L_spin1",
         f"  s_mul_i32 s{sTMP}, s{sB}, 1280", f"  s_add_u32 s{SX}, s40, s{sTMP}", f"  s_addc_u32 s{SX+1}, s41, 0", f"  s_mov_b32 s{SX+2}, 1280",
         f"  s_mul_i32 s{sTMP}, s{sH}, 384", f"  s_add_u32 s{SWQ}, s46, s{sTMP}", f"  s_addc_u32 s{SWQ+1}, s47, 0", f"  s_mov_b32 s{SWQ+2}, {639*12288+384}",
         f"  v_lshrrev_b32 v252, 5, v0", f"  v_mul_u32_u24 v253, 640, v252", f"  v_mul_u32_u24 v252, {320*12288}, v252",
         f"  v_and_b32 v254, 31, v0", f"  v_min_u32 v254, 23, v254", f"  v_lshl_add_u32 v252, v254, 4, v252",
         f"  s_mov_b32 s{sTMP}, 0", f"  s_mov_b32 s{sTMP2}, 0"]
    R += [f"  v_mov_b32 v{FA+r}, 0" for r in range(16)]
    R += ["L_fb1:", f"  buffer_load_ushort v254, v253, {srd(SX)}, s{sTMP} offen", f"  buffer_load_dwordx4 {v4(FD)}, v252, {srd(SWQ)}, s{sTMP2} offen",
          "  s_waitcnt vmcnt(0)", f"  v_perm_b32 v{VP}, v254, v254, s{sPLO}"]
    R += [f"  v_and_b32 v{SEL+k}, v{VP}, v{MK+k}" for k in range(4)]
    R += [f"  v_mfma_f32_32x32x16_bf16 {v16(FA)}, {v4(SEL)}, {v4(FD)}, {v16(FA)}", "  s_nop 7", "  s_nop 7",
          f"  s_add_u32 s{sTMP}, s{sTMP}, 2", f"  s_add_u32 s{sTMP2}, s{sTMP2}, 12288", f"  s_cmp_lt_u32 s{sTMP}, 640", "  s_cbranch_scc1 L_fb1",
          f"  v_cvt_pk_bf16_f32 v{FD}, v{FA}, v{FA+1}", f"  v_cvt_pk_bf16_f32 v{FD+1}, v{FA+2}, v{FA+3}",
          f"  v_and_b32 v254, 31, v0", f"  v_lshlrev_b32 v254, 4, v254", f"  v_lshrrev_b32 v253, 5, v0", f"  v_lshl_add_u32 v254, v253, 3, v254",
          "  s_mov_b32 exec_lo, 0x00ffffff", "  s_mov_b32 exec_hi, 0x00ffffff",
          f"  ds_write_b64 v254, v[{FD}:{FD+1}] offset:{QB}", "  s_mov_b64 exec, -1", "  s_waitcnt lgkmcnt(0)",
          f"  s_mov_b32 s{sFB}, 1", "  s_branch L_pok",
          "L_spin2:"] + ([f"  s_sub_u32 s{sBH}, {NSPIN+1}, s{sFB}"] if stamps else []) + [f"  s_mov_b32 s{sFB}, 0", "  s_branch L_pok"]
    rare.extend(pad(R))
    A("  s_mov_b64 exec, s[76:77]" if 'l' not in DBG else "  s_mov_b64 exec, 0")
    issue(mk("x", 0, 0, "v", XA, f"  buffer_load_dwordx4 {v4(XA)}, v58, {srd(SQX)}, s74 offen sc1", [f"  s_mul_i32 s74, s{sB}, 1536", f"  s_add_u32 s74, s74, s{sQO}"]))
    issue(mk("x", 0, 0, "v", XA+4, f"  buffer_load_dwordx4 {v4(XA+4)}, v58, {srd(SQX)}, s74 offen offset:768 sc1"))
    A("  s_mov_b64 exec, -1")
    p = len(S) - 1
    A(f"  v_add_u32 v60, v1, v8"); A(f"  v_add_u32 v61, v1, v9")
    while st["comp"] < p: pump(DA)
    A(f"  s_cmp_lg_u32 s{sW}, {CW}"); A("  s_cbranch_scc1 L_qno")
    A(f"  s_cmp_lg_u32 s{sFB}, 0"); A("  s_cbranch_scc1 L_qfb")
    for r in range(4): A(f"  v_add_f32 v{XA+r}, v{XA+r}, v{XA+4+r}")
    A(f"  v_cvt_pk_bf16_f32 v{XA}, v{XA}, v{XA+1}"); A(f"  v_cvt_pk_bf16_f32 v{XA+1}, v{XA+2}, v{XA+3}")
    A(f"  v_lshlrev_b32 v57, 3, v0")
    A("  s_mov_b64 exec, s[76:77]")
    A(f"  ds_write_b64 v57, v[{XA}:{XA+1}] offset:{QB}")
    A("  s_mov_b64 exec, -1")
    A("L_qfb:")
    A(f"  v_mov_b32 v59, 1")
    A("  s_waitcnt lgkmcnt(0)")
    A(f"  ds_write_b32 v{VZ}, v59 offset:{FL+276}")
    A("L_qno:")
    for r in range(12): A(f"  v_mov_b32 v{ACC+r}, 0")
    for _ in range(QD): pump(DA)
    A("L_qw:"); A(f"  ds_read_b32 v59, v{VZ} offset:{FL+276}"); A("  s_waitcnt lgkmcnt(0)"); A(f"  v_readfirstlane_b32 s{sTMP}, v59")
    A(f"  s_cmp_eq_u32 s{sTMP}, 0"); A("  s_cbranch_scc1 L_qw")
    A(f"  ds_read_b128 {v4(Q)}, v60 offset:{QB}"); A(f"  ds_read_b128 {v4(Q+4)}, v60 offset:{QB+128}"); A(f"  ds_read_b128 {v4(Q+8)}, v61 offset:{QB}")
    A(f"  v_lshlrev_b32 v56, 1, v1"); A(f"  v_bfe_u32 v57, v0, 4, 1"); A(f"  v_lshl_add_u32 v56, v57, 4, v56")
    A(f"  v_mul_u32_u24 v57, 768, v3"); A(f"  v_add_u32 v56, v56, v57")
    A(f"  s_mul_i32 s{sTMP}, s{sW}, 1536"); A(f"  v_add_u32 v56, s{sTMP}, v56")
    pump(DA)
    A("  s_waitcnt lgkmcnt(0)")
    stamp(2)
    qpos = K["i"]
    qready[0] = True; K["wo"] = True
    st["credit"] = 6
    drain()
    while K["wi"] < 60: pump(DT)
    lastwo = len(S) - 1
    while True:
        pump(D)
        nxt = S[len(S) - D]
        if len(S) - D > lastwo and nxt.kind == "k" and nxt.t == 0 and nxt.step % 2 == 0 and not backlog and cptr[0] == len(S) - D: break
    ki = K["i"]
    n0 = nxt.step
    niter = (126 - n0)//2
    nread = [l for l in kv[ki:ki+12] if any("readlane" in p for p in l.pre)]
    assert len(nread) == 1
    k0 = (nread[0].step + 1 - 2)//2
    A(f"  s_mov_b32 s{sIDX}, {k0}")
    stamp(3)
    if vers:
        A(f"  v_mov_b32 v58, s{sBASE}"); A(f"  v_mov_b32 v59, s{sBASE}"); A(f"  v_mov_b32 v{VPG}, {GN//2}")
        tk = sorted(k0 + niter - r for r in TK if r <= niter)
        for w in range(4):
            m = sum(1 << t for i, t in enumerate(tk) if i % 4 == w)
            assert not (m & (m << 1))
            A(f"  s_cmp_eq_u32 s{sW}, {w}"); A(f"  s_cmov_b32 s40, {hex(m & 0xffffffff)}"); A(f"  s_cmov_b32 s41, {hex(m >> 32)}")
        A(f"  s_lshl_b64 s[42:43], s[40:41], 1")
        A(f"  v_cmp_eq_u32 vcc, 0, v0"); A(f"  v_cndmask_b32 v{VPL}, 0, {2*KW}, vcc")
        A(f"  v_mov_b32 v{VPS}, {-5*KW}"); A(f"  v_lshlrev_b32 v57, 2, v0")
    pre = L; L = []; A = L.append
    nrare = len(rare)
    A("L_loop:")
    for j in range(12):
        o = kv[ki + j]
        l = kv_load(o.step, o.kind == "v", o.t, loop=True)
        if vers and j == 10:
            A(f"  ds_read_b64 v[58:59], v{VZ} offset:{FL+8}")
            A(f"  ds_add_rtn_u32 v{VPS}, v57, v{VPL} offset:{FL+16}")
        wait(D - 1); issue(l); drain()
    A(f"  s_cmp_lt_u32 s{sIDX}, {k0 + niter}"); A("  s_cbranch_scc1 L_loop")
    body = L; L = []; A = L.append
    if vers:
        core = pad(body[1:-2]); rb = rare[nrare:]; del rare[nrare:]
        check_loop(core)
        body = ["L_disp:", "  s_waitcnt lgkmcnt(0)", f"  v_readfirstlane_b32 s{sD}, v58",
                f"  s_bitcmp1_b64 s[40:41], s{sIDX}", "  s_cbranch_scc1 L_duty", f"  s_bitcmp1_b64 s[42:43], s{sIDX}", "  s_cbranch_scc1 L_proc", "L_sel:",
                f"  v_readfirstlane_b32 s{sTMP}, v{VPS}", f"  s_mul_i32 s{sTMP2}, s{sIDX}, {8*KW}", f"  s_sub_i32 s{sTMP}, s{sTMP}, s{sTMP2}",
                f"  s_add_i32 s{sD}, s{sD}, s{sTMP}", f"  s_add_i32 s{sD}, s{sD}, {8*KW*(k0+1) - 3*KW}",
                f"  s_ashr_i32 s{sD}, s{sD}, 6", f"  s_max_i32 s{sD}, s{sD}, 0", f"  s_min_i32 s{sD}, s{sD}, {len(vers)-1}"]
        R = ["L_duty:", f"  v_mov_b32 v{VPG}, 1", f"  s_mul_i32 s{sTMP}, s{sIDX}, {LST}",
             f"  s_mul_i32 s{sTMP2}, s{sIDX}, s100", f"  s_add_u32 s{sTMP2}, s{sTMP2}, s101",
             f"  s_and_b32 s{sTMP2}, s{sTMP2}, {256//GN-1}", f"  s_mul_i32 s{sTMP2}, s{sTMP2}, {64*LST+256}", f"  s_add_u32 s{sTMP}, s{sTMP}, s{sTMP2}",
             "  s_mov_b64 exec, 1", f"  buffer_atomic_add v{VPG}, v{VZ}, {srd(SPG)}, s{sTMP} offen sc0 sc1", "  s_mov_b64 exec, -1", "  s_branch L_sel"]
        rare.extend(pad(R))
        R = ["L_proc:", f"  v_readfirstlane_b32 s{sTMP}, v{VPG}", f"  v_readfirstlane_b32 s{sBASE}, v59",
             f"  s_min_u32 s{sTMP}, s{sTMP}, {GN-1}", f"  s_lshl_b32 s{sTMP}, s{sTMP}, 1", f"  s_sub_i32 s{sTMP}, s{sTMP}, {GN-1}",
             f"  s_mul_i32 s{sTMP2}, s{sTMP}, {KI}", f"  s_add_i32 s{sBASE}, s{sBASE}, s{sTMP2}",
             f"  s_max_i32 s{sBASE}, s{sBASE}, {round(ILO*64)}", f"  s_min_i32 s{sBASE}, s{sBASE}, {round(IHI*64)}",
             f"  s_mul_i32 s{sTMP}, s{sTMP}, {KP}", f"  s_add_i32 s{sD}, s{sTMP}, s{sBASE}",
             f"  v_mov_b32 v60, s{sD}", f"  v_mov_b32 v61, s{sBASE}", f"  ds_write_b64 v{VZ}, v[60:61] offset:{FL+8}", "  s_branch L_sel"]
        rare.extend(pad(R))
        for i in range(1, len(vers)):
            body += [f"  s_cmp_eq_u32 s{sD}, {i}", f"  s_cbranch_scc1 L_v{i}"]
        for i, d in enumerate(vers):
            assert d <= D
            ren = lambda s: re.sub(r"(L_r[sb]\d+)", lambda m: m.group(1) + f"_{i}", s)
            body.append(f"L_v{i}:")
            c = 0
            for ln in core:
                if ln == f"  s_waitcnt vmcnt({D-1})":
                    dd = math.floor(d) if c % 2 == 0 else math.ceil(d); c += 1
                    ln = f"  s_waitcnt vmcnt({dd-1})"
                body.append(ren(ln))
            assert c == 12
            body += [f"  s_cmp_lt_u32 s{sIDX}, {k0 + niter}", "  s_cbranch_scc1 L_disp"]
            if i < len(vers) - 1: body.append("  s_branch L_tail")
            rare.extend(ren(x) for x in rb)
        body.append("L_tail:")
    ki += 12*niter
    while ki < 768:
        wait(D - 1); issue(kv[ki]); ki += 1; drain()
    for n in range(D - 1, -1, -1):
        wait(n); drain()
    assert cptr[0] == len(S)
    stamp(4)
    A(f"  v_add_f32_dpp v{VLS}, v{VLS}, v{VLS} row_ror:8 row_mask:0xf bank_mask:0xf")
    A(f"  v_lshlrev_b32 v57, 8, v3"); A(f"  v_add_u32 v57, v56, v57")
    A(f"  v_lshl_add_u32 v58, v9, 1, v56")
    A(f"  v_lshrrev_b32 v59, 1, v0"); A(f"  s_lshl_b32 s{sTMP}, s{sW}, 5"); A(f"  v_add_u32 v59, s{sTMP}, v59")
    A(f"  v_mov_b32 v60, v{VNML}"); A(f"  v_mov_b32 v61, v{VLS}")
    A("  s_mov_b32 exec_lo, 0x00ff00ff"); A("  s_mov_b32 exec_hi, 0xff00ff00")
    A(f"  ds_write_b128 v57, {v4(ACC)} offset:{OP}"); A(f"  ds_write_b128 v57, {v4(ACC+4)} offset:{OP+256}"); A(f"  ds_write_b128 v58, {v4(ACC+8)} offset:{OP}")
    A("  s_mov_b32 exec_lo, 0x00010001"); A("  s_mov_b32 exec_hi, 0x00010001")
    A(f"  ds_write_b64 v59, v[60:61] offset:{ML}")
    A("  s_mov_b64 exec, -1")
    A(f"  v_mov_b32 v57, 0")
    A(f"  s_mul_i32 s{sTMP}, s{sW}, 192"); A(f"  v_lshlrev_b32 v58, 2, v0"); A(f"  v_add_u32 v58, s{sTMP}, v58")
    A("  s_waitcnt lgkmcnt(0)"); A("  s_barrier")
    stamp(1, 1)
    E = 112
    for k in range(8): A(f"  ds_read_b128 {v4(E+4*k)}, v57 offset:{ML+16*k}")
    for p in range(8): A(f"  ds_read_b32 v{E+32+p}, v58 offset:{OP+768*p}")
    OA = 64
    for r in range(20): A(f"  v_mov_b32 v{OA+r}, 0")
    A("  s_waitcnt lgkmcnt(0)" if stamps else "  s_waitcnt lgkmcnt(8)")
    A(f"  v_min_f32 v{VTMP}, v{E}, v{E+8}"); A(f"  v_min3_f32 v{VTMP}, v{E+16}, v{E+24}, v{VTMP}")
    for w in range(4):
        A(f"  v_sub_f32 v{E+8*w}, v{VTMP}, v{E+8*w}"); A(f"  v_exp_f32 v{E+8*w}, v{E+8*w}")
        A(f"  v_add_f32 v{E+8*w+1}, v{E+8*w+1}, v{E+8*w+3}"); A(f"  v_add_f32 v{E+8*w+5}, v{E+8*w+5}, v{E+8*w+7}"); A(f"  v_add_f32 v{E+8*w+1}, v{E+8*w+1}, v{E+8*w+5}")
    A(f"  v_mul_f32 v{VP}, v{E}, v{E+1}")
    for w in range(1, 4): A(f"  v_fma_f32 v{VP}, v{E+8*w}, v{E+8*w+1}, v{VP}")
    A(f"  v_rcp_f32 v{VP}, v{VP}")
    A("  s_waitcnt lgkmcnt(0)")
    for w in range(4): A(f"  v_add_f32 v{E+32+2*w}, v{E+32+2*w}, v{E+33+2*w}")
    A(f"  v_mul_f32 v{VS}, v{E}, v{E+32}")
    for w in range(1, 4): A(f"  v_fma_f32 v{VS}, v{E+8*w}, v{E+32+2*w}, v{VS}")
    A(f"  v_mul_f32 v{VS}, v{VS}, v{VP}")
    A(f"  v_cvt_pk_bf16_f32 v{VS}, v{VS}, v{VS}")
    A(f"  s_lshl_b32 s{sTMP}, s{sW}, 7"); A(f"  v_lshlrev_b32 v58, 1, v0"); A(f"  v_add_u32 v58, s{sTMP}, v58")
    A(f"  ds_write_b16 v58, v{VS} offset:{OB}")
    A(f"  v_mul_u32_u24 v59, 24, v4"); A(f"  v_add_u32 v59, s{sTMP}, v59")
    A("  s_waitcnt lgkmcnt(0)")
    for k in range(3): A(f"  ds_read_b64 v[{Q+2*k}:{Q+2*k+1}], v59 offset:{OB+8*k}")
    A(f"  v_lshlrev_b32 v57, 1, v1"); A(f"  v_bfe_u32 v58, v0, 4, 1"); A(f"  v_lshl_add_u32 v57, v58, 4, v57"); A(f"  v_lshl_add_u32 v57, v3, 8, v57")
    A(f"  s_mul_i32 s{sTMP}, s{sW}, 2560"); A(f"  v_add_u32 v57, s{sTMP}, v57")
    A("  s_waitcnt lgkmcnt(0)")
    stamp(2, 1)
    for rb in range(12):
        sel = SEL if rb % 2 == 0 else ACC
        A(f"  v_perm_b32 v{VP}, v{Q + rb//2}, v{Q + rb//2}, s{sPHI if rb % 2 else sPLO}")
        for k in range(4): A(f"  v_and_b32 v{sel+k}, v{VP}, v{MK+k}")
        for tp in range(5):
            A(f"  v_mfma_f32_16x16x32_bf16 {v4(OA+4*tp)}, {v4(sel)}, {v4(wo_reg(rb*5+tp),'a')}, {v4(OA+4*tp)}")
    A("  s_mov_b32 exec_hi, 0")
    for tp in range(5): A(f"  ds_write_b128 v57, {v4(OA+4*tp)} offset:{FP+512*tp}")
    A("  s_mov_b64 exec, -1")
    A(f"  s_lshl_b32 s{sTMP}, s{sW}, 10"); A(f"  v_lshlrev_b32 v58, 4, v0"); A(f"  v_add_u32 v58, s{sTMP}, v58")
    A("  s_waitcnt lgkmcnt(0)"); A("  s_barrier")
    stamp(3, 1)
    A(f"  s_cmp_eq_u32 s{sW}, 3"); A("  s_cbranch_scc1 L_skipst")
    for w in range(4): A(f"  ds_read_b128 {v4(E+4*w)}, v58 offset:{FP+2560*w}")
    A(f"  s_mul_i32 s{sTMP}, s{sH}, 2560")
    A(f"  v_cmp_gt_u32 vcc, 2560, v58")
    A("  s_waitcnt lgkmcnt(0)")
    for r in range(4):
        A(f"  v_add_f32 v{E+r}, v{E+r}, v{E+4+r}"); A(f"  v_add_f32 v{E+8+r}, v{E+8+r}, v{E+12+r}"); A(f"  v_add_f32 v{E+r}, v{E+r}, v{E+8+r}")
    A("  s_mov_b64 exec, vcc")
    A(f"  buffer_store_dwordx4 {v4(E)}, v58, {srd(SWS)}, s{sTMP} offen sc1")
    A("  s_mov_b64 exec, -1")
    A("  s_waitcnt vmcnt(0)")
    A("L_skipst:")
    stamp(5)
    A("  s_barrier")
    A(f"  v_mov_b32 v59, 0")
    A(f"  s_cmp_lg_u32 s{sW}, 0"); A("  s_cbranch_scc1 L_skipat")
    A(f"  s_lshl_b32 s{sTMP}, s{sB}, 5")
    A("  v_mov_b32 v60, 1")
    A("  s_mov_b64 exec, 1")
    A(f"  buffer_atomic_add v60, v59, {srd(SDBG)}, s{sTMP} offen sc0 sc1")
    A("  s_waitcnt vmcnt(0)")
    A(f"  ds_write_b32 v59, v60 offset:{FL}")
    A("  s_mov_b64 exec, -1")
    A("  s_waitcnt lgkmcnt(0)")
    A("L_skipat:")
    A("  s_barrier")
    A(f"  ds_read_b32 v60, v59 offset:{FL}")
    A("  s_waitcnt lgkmcnt(0)")
    A(f"  v_readfirstlane_b32 s{sTMP}, v60")
    A(f"  s_cmp_lg_u32 s{sTMP}, 31"); A("  s_cbranch_scc1 L_fin")
    A(f"  v_lshlrev_b32 v57, 4, v0")
    A(f"  s_mul_i32 s{sTMP}, s{sW}, 20480")
    for k in range(20):
        if k and k % 4 == 0: A(f"  s_add_u32 s{sTMP}, s{sTMP}, 4096")
        o = (k % 4)*1024
        A(f"  buffer_load_dwordx4 {v4(E+4*k)}, v57, {srd(SWS)}, s{sTMP} offen" + (f" offset:{o}" if o else "") + " sc1")
    A(f"  s_mul_i32 s{sTMP}, s{sW}, 5120"); A(f"  v_add_u32 v57, s{sTMP}, v57")
    for k in range(5, 20):
        A(f"  s_waitcnt vmcnt({19-k})")
        for r in range(4): A(f"  v_add_f32 v{E+4*(k%5)+r}, v{E+4*(k%5)+r}, v{E+4*k+r}")
    for k in range(5): A(f"  ds_write_b128 v57, {v4(E+4*k)} offset:{RP+1024*k}")
    A("  s_waitcnt lgkmcnt(0)"); A("  s_barrier")
    A(f"  s_cmp_eq_u32 s{sW}, 3"); A("  s_cbranch_scc1 L_fin")
    for p in range(8): A(f"  ds_read_b128 {v4(E+4*p)}, v58 offset:{RP+2560*p}")
    A(f"  v_lshrrev_b32 v58, 1, v58")
    A("  s_waitcnt lgkmcnt(0)")
    for r in range(4):
        for p in range(1, 8): A(f"  v_add_f32 v{E+r}, v{E+r}, v{E+4*p+r}")
    A(f"  v_cvt_pk_bf16_f32 v{E}, v{E}, v{E+1}"); A(f"  v_cvt_pk_bf16_f32 v{E+1}, v{E+2}, v{E+3}")
    A(f"  buffer_store_dwordx2 v[{E}:{E+1}], v58, {srd(SOUT)}, 0 offen")
    A("  s_waitcnt vmcnt(0)")
    A("L_fin:")
    if stamps:
        stamp(6)
        A("  s_getreg_b32 s94, hwreg(HW_REG_XCC_ID)"); A("  s_and_b32 s94, s94, 7"); A(f"  s_lshl_b32 s{sBH}, s{sBH}, 8"); A(f"  s_or_b32 s94, s94, s{sBH}")
        A(f"  s_lshl_b32 s{sFB}, s{sFB}, 24"); A(f"  s_or_b32 s94, s94, s{sFB}")
        A("  s_waitcnt lgkmcnt(0)")
        A(f"  s_lshl_b32 s{sTMP}, s2, 2"); A(f"  s_add_u32 s{sTMP}, s{sTMP}, s{sW}"); A(f"  s_lshl_b32 s{sTMP}, s{sTMP}, 5")
        A(f"  s_mov_b32 s{SWS}, s54"); A(f"  s_mov_b32 s{SWS+1}, s55"); A(f"  s_mov_b32 s{SWS+2}, 0x100000"); A(f"  s_mov_b32 s{SWS+3}, 0x20000")
        for k in range(8): A(f"  v_mov_b32 v{4+k}, s{80+2*k}")
        A("  v_mov_b32 v3, 0")
        A("  s_mov_b64 exec, 1"); A(f"  buffer_store_dwordx4 v[4:7], v3, {srd(SWS)}, s{sTMP} offen"); A(f"  buffer_store_dwordx4 v[8:11], v3, {srd(SWS)}, s{sTMP} offen offset:16"); A("  s_waitcnt vmcnt(0)")
    A("L_end:"); A("  s_endpgm")
    post = L
    allp = pad(pre + body + post)
    if not vers:
        i0 = allp.index("L_loop:"); i1 = allp.index("  s_cbranch_scc1 L_loop")
        check_loop(allp[i0:i1+1])
    T = [HDR.rstrip("\n"), f"; @launch grid=(256,1,1) block=(256,1,1) lds={LDS}",
         '.amdgcn_target "amdgcn-amd-amdhsa--gfx950"', ".text", f".globl {NAME}", ".p2align 8", f".type {NAME},@function", f"{NAME}:"]
    T += allp + rare
    T += ['.section .rodata,"a"', ".p2align 6", f".amdhsa_kernel {NAME}", "  .amdhsa_next_free_vgpr 512", "  .amdhsa_next_free_sgpr 102",
          "  .amdhsa_accum_offset 256", "  .amdhsa_group_segment_fixed_size 0", "  .amdhsa_kernarg_size 64", "  .amdhsa_user_sgpr_count 2",
          "  .amdhsa_user_sgpr_kernarg_segment_ptr 1", "  .amdhsa_system_sgpr_workgroup_id_x 1", ".end_amdhsa_kernel"]
    open(fn, "w").write("\n".join(T) + "\n")
    sys.stderr.write(f"{fn}: qpos={qpos} n0={n0} k0={k0} niter={niter} lines={len(T)}\n")
    return fn
if __name__ == "__main__":
    from build import build
    import genk, genk2, genk3
    os.makedirs("k", exist_ok=True)
    cfgs = eval(open(sys.argv[1]).read())
    outs = []
    for n, kw in cfgs.items():
        kw = dict(kw); g = [gen, genk.gen, genk2.gen, genk3.gen][int(kw.pop("old", 0))]
        g(f"k/{n}.s", **kw); build(f"k/{n}.s", quiet=True); outs.append(f"k/{n}.co")
    print(" ".join(outs))
```

```python
import sys, os, re, math, struct
from hz import pad, check_loop
NAME = "standalone__gqa_block_cached__decode_kernel"
HDR = open("standalone__gqa_block_cached__decode.s.ref").read().split("; Override launch")[0]
def f2u(f): return struct.unpack("<I", struct.pack("<f", f))[0]
LOG2E = 1.4426950408889634
SCALE = 192 ** -0.5
def mulshift(div, maxv):
    for sh in range(4, 24):
        m = (1 << sh) // div + 1
        if m * maxv < (1 << 24) * 256 and m < (1 << 24) and all(((v * m) >> sh) == v // div for v in range(maxv + 1)):
            if m * maxv < (1 << 32): return m, sh
    raise Exception("no mulshift")
QP = 0
QB = 6144
OP = 7680
ML = 13824
FL = ML + 64
SC = FL + 288
FP = SC + 16896
RP = FP + 10240
LDS = RP + 20480 + 512
WS_PART = 0x100000
TKA = [44,39,34,30,25,20,16,12,9,7,5,3]

def gen(fn, D=8, DA=8, DT=8, DB=6, DE=8, R1=63, R2=3, stamps=False, kvflags="nt", vflags=None, wqflags=None, wo_per_step=3, NBV=10, NBA=10, wflags="nt", SS=0,
        vers=(4.5,5,5.5,6,6.5,7,8), GN=8, KP=16, KI=2, BASE=3.0, ILO=1.0, IHI=6.0, LST=4352, PB=0.7, KW=16, TK=TKA, BR=1, WOV=False,
        comments=False, DIAG=None, SP=(), NOWQ=0, WQ0=0, WQN=None, WQB=1, WQM=0, WOB=1, WOM=0, XP=0, XPQ=1, XPO=24, XPN=2, XPF="", KA=None, KT=None, ZL=0, S2=None, EP=1, TW=0, TP=1, PLIM=4096, SPOS=None, sflags="sc1", SPR=1, WS_TICK=0x200000, NOSENT=0, EARLY=0):
    L = []; A = L.append
    def C(s):
        if comments: A("  ; " + s)
    rare = []
    NBIG = NBV + NBA
    VA0, VA2, VL0, VL2, VT = 10, 11, 12, 13, 14
    MK = 16; Q = 20; ACC = 32; SEL = 44
    VS, VTMP, VM, VNML, VLS, VP, VWQ, VWO = 48, 49, 50, 52, 53, 51, 54, 55
    RG, BK = 64, 112
    VPL, VPS, VPG, VZ = 15, 62, 63, 5
    TA = 232; SEL2 = 240; SR = 244; PR = 248; VSA, VSL, VF = 252, 253, 254
    SK, SV, SWQ, SWO, SX, SWS, SOUT, SDBG = 8, 12, 16, 20, 24, 28, 32, 36
    SPG = 96
    sW, sB, sH, sBH, sOFF, sT, sIDX, sL0, sL1, sLOG, sSC, sPLO, sPHI, sTMP, sTMP2, sWOFF, sHI16 = 56, 57, 58, 59, 60, 61, 62, 63, 64, 65, 66, 67, 68, 69, 70, 71, 72
    sD = 73; sIT = 78; sBASE = 79; sSL = 95
    def srd(n): return f"s[{n}:{n+3}]"
    def v4(n, p="v"): return f"{p}[{n}:{n+3}]"
    def stamp(k, ss=0):
        if SS and ss == 0 and k in (1, 2, 3): return
        if ss and ss != SS: return
        if stamps: A(f"  s_memrealtime s[{80+2*k}:{81+2*k}]")
    DPP = "row_mask:0xf bank_mask:0xf"

    A(f"  s_cmp_ge_u32 s2, 256"); A("  s_cbranch_scc1 L_end")
    A("  s_load_dwordx16 s[40:55], s[0:1], 0")
    stamp(0)
    C("one workgroup per (b,h); h = 4*(g%8) + (g>>3)%4, b = g>>5 (the 8 users of one wq/wo slice share an L2: speed only)")
    A("  v_lshrrev_b32 v1, 6, v0"); A(f"  v_readfirstlane_b32 s{sW}, v1")
    A("  v_and_b32 v0, 63, v0")
    A(f"  s_and_b32 s{sH}, s2, 7"); A(f"  s_lshl_b32 s{sH}, s{sH}, 2"); A(f"  s_bfe_u32 s{sTMP}, s2, {3 | (2 << 16)}"); A(f"  s_add_u32 s{sH}, s{sH}, s{sTMP}")
    A(f"  s_lshr_b32 s{sB}, s2, 5")
    A(f"  s_lshl_b32 s{sBH}, s{sB}, 5"); A(f"  s_add_u32 s{sBH}, s{sBH}, s{sH}")
    A("  v_and_b32 v1, 7, v0"); A("  v_lshlrev_b32 v1, 4, v1"); A("  v_lshrrev_b32 v2, 3, v0"); A("  v_and_b32 v3, 1, v2"); A("  v_lshrrev_b32 v4, 4, v0")
    A(f"  v_mul_u32_u24 v{VS}, {4 if WQM else 40}, v2")
    A(f"  v_mul_u32_u24 v{VWQ}, {(2 if WQM else 20)*12288}, v2"); A(f"  v_add_u32 v{VWQ}, v{VWQ}, v1")
    A("  v_add_u32 v6, 1, v2"); A("  v_mul_u32_u24 v6, 11, v6"); A("  v_lshrrev_b32 v6, 5, v6"); A("  v_mul_u32_u24 v6, 84, v6")
    A("  v_mul_u32_u24 v7, 85, v2"); A("  v_add_u32 v7, 84, v7"); A("  v_sub_u32 v7, v7, v6"); A("  v_mul_u32_u24 v7, 384, v7"); A("  v_add_u32 v7, v7, v1")
    A("  v_lshlrev_b32 v8, 7, v3")
    A("  v_lshlrev_b32 v9, 8, v3"); A("  v_sub_u32 v9, 256, v9")
    A(f"  v_add_u32 v{VL0}, v7, v8"); A(f"  v_add_u32 v{VL2}, v7, v9")
    A(f"  s_mul_i32 s{sL0}, s{sW}, {2*196608}"); A(f"  s_add_u32 s{sL1}, s{sL0}, 196608")
    A(f"  s_mul_i32 s{sTMP}, s{sB}, 1280"); A(f"  s_mul_i32 s{sTMP2}, s{sW}, {32 if WQM else 320}"); A(f"  s_add_u32 s{sTMP}, s{sTMP}, s{sTMP2}")
    A(f"  s_mul_i32 s{sOFF}, s{sH}, 384"); A(f"  s_mul_i32 s{sTMP2}, s{sW}, {(16 if WQM else 160)*12288}"); A(f"  s_add_u32 s{sTMP2}, s{sOFF}, s{sTMP2}")
    A(f"  s_mul_i32 s{sOFF}, s{sBH}, 1572864")
    A(f"  s_mov_b32 s{SX+2}, {1280-96 if WQM else 320}"); A(f"  s_mov_b32 s{SX+3}, 0x20000"); A(f"  s_mov_b32 s{SWQ+2}, {(591 if WQM else 159)*12288+384}"); A(f"  s_mov_b32 s{SWQ+3}, 0x20000")
    A(f"  s_mov_b32 s{SK+2}, 1572864"); A(f"  s_mov_b32 s{SK+3}, 0x20000"); A(f"  s_mov_b32 s{SV+2}, 1572864"); A(f"  s_mov_b32 s{SV+3}, 0x20000")
    A("  s_waitcnt lgkmcnt(0)")
    A(f"  s_add_u32 s{SX}, s40, s{sTMP}"); A(f"  s_addc_u32 s{SX+1}, s41, 0")
    A(f"  s_add_u32 s{SWQ}, s46, s{sTMP2}"); A(f"  s_addc_u32 s{SWQ+1}, s47, 0")
    A(f"  s_add_u32 s{SK}, s42, s{sOFF}"); A(f"  s_addc_u32 s{SK+1}, s43, 0")
    A(f"  s_add_u32 s{SV}, s44, s{sOFF}"); A(f"  s_addc_u32 s{SV+1}, s45, 0")

    def setup1():
        A("  v_mul_u32_u24 v6, 384, v4"); A(f"  v_mul_u32_u24 v7, {85*384}, v3"); A("  v_add_u32 v6, v6, v7"); A("  v_add_u32 v6, v6, v1")
        A(f"  v_add_u32 v{VA0}, v6, v8"); A(f"  v_add_u32 v{VA2}, v6, v9")
        A(f"  s_bfe_u32 s{sTMP}, s2, {3 | (3 << 16)}"); A(f"  s_mul_i32 s{sTMP}, s{sTMP}, {R1}")
        A(f"  s_bfe_u32 s{sTMP2}, s2, {6 | (2 << 16)}"); A(f"  s_mul_i32 s{sTMP2}, s{sTMP2}, {R2}"); A(f"  s_add_u32 s{sTMP}, s{sTMP}, s{sTMP2}")
        A(f"  s_add_u32 s{sTMP}, s{sTMP}, s{sW}")
        assert 7*R1 + 3*R2 < 504
        m21, s21 = mulshift(21, 1100); m3, s3 = mulshift(3, 60)
        for half in range(2):
            A("  v_lshlrev_b32 v6, 3, v0")
            if half: A("  v_add_u32 v6, 4, v6")
            A(f"  v_add_u32 v6, s{sTMP}, v6")
            A("  v_subrev_u32 v7, 504, v6"); A("  v_cmp_le_u32 vcc, 504, v6"); A("  v_cndmask_b32 v6, v6, v7, vcc")
            A(f"  v_mul_u32_u24 v7, {m21}, v6"); A(f"  v_lshrrev_b32 v7, {s21}, v7")
            A(f"  v_mul_u32_u24 v57, {m3}, v7"); A(f"  v_lshrrev_b32 v57, {s3}, v57")
            A("  v_mul_u32_u24 v7, 87, v7"); A("  v_sub_u32 v7, v7, v57"); A("  v_lshl_add_u32 v7, v6, 2, v7")
            if half == 0: A(f"  v_and_b32 v{VT}, 0xffff, v7")
            else: A(f"  v_lshl_or_b32 v{VT}, v7, 16, v{VT}")
    def setup_sws():
        A(f"  s_mul_i32 s{sTMP}, s{sB}, {32*2560}"); A(f"  s_add_u32 s{sTMP}, s{sTMP}, {WS_PART}")
        A(f"  s_add_u32 s{SWS}, s54, s{sTMP}"); A(f"  s_addc_u32 s{SWS+1}, s55, 0"); A(f"  s_mov_b32 s{SWS+2}, {32*2560}"); A(f"  s_mov_b32 s{SWS+3}, 0x20000")
    def setup_spg():
        lg = GN.bit_length() - 1
        A(f"  s_lshr_b32 s101, s2, {lg}")
        A(f"  s_add_u32 s{SPG}, s54, {WS_TICK}"); A(f"  s_addc_u32 s{SPG+1}, s55, 0"); A(f"  s_mov_b32 s{SPG+2}, {(256//GN)*(64*LST+256)}"); A(f"  s_mov_b32 s{SPG+3}, 0x20000")
    def sentinel():
        C("mark this wave's output-partial slot as not yet written (all-ones words); done long before the ticket below")
        for r in range(4): A(f"  v_mov_b32 v{TA+r}, -1")
        A(f"  s_mul_i32 s{sSL}, s{sW}, 20480"); A(f"  s_mul_i32 s{sTMP}, s{sH}, 640"); A(f"  s_add_u32 s{sSL}, s{sSL}, s{sTMP}")
        A(f"  v_lshlrev_b32 v6, 4, v0")
        if NOSENT == 1: return
        A("  s_mov_b32 exec_hi, 0xff") if not NOSENT else A("  s_mov_b64 exec, 0xfffff")
        A(f"  buffer_store_dwordx4 {v4(TA)}, v6, {srd(SWS)}, s{sSL} offen {sflags}")
        A("  s_mov_b64 exec, -1") if NOSENT else A("  s_mov_b32 exec_hi, -1")
    def zero_ticks():
        A(f"  s_mul_i32 s{sTMP2}, s101, {64*LST + 256}")
        A(f"  s_lshl_b32 s{sTMP}, s2, 2"); A(f"  s_add_u32 s{sTMP}, s{sTMP}, s{sW}")
        A(f"  v_xor_b32 v6, s{sTMP}, v0"); A(f"  v_and_b32 v6, {min(4*GN,64)-1}, v6"); A(f"  v_cmp_eq_u32 vcc, 0, v6")
        A(f"  v_mul_u32_u24 v6, {LST}, v0")
        A(f"  s_mov_b64 exec, vcc")
        A(f"  buffer_store_dword v{VZ}, v6, {srd(SPG)}, s{sTMP2} offen sc1")
        A(f"  s_mov_b64 exec, -1")
    def setup_swo():
        A(f"  s_mul_i32 s{sTMP}, s{sH}, {192*1280}"); A(f"  s_mul_i32 s{sTMP2}, s{sW}, {(4 if WOM == 2 else 48)*1280}"); A(f"  s_add_u32 s{sTMP}, s{sTMP}, s{sTMP2}")
        A(f"  s_add_u32 s{SWO}, s48, s{sTMP}"); A(f"  s_addc_u32 s{SWO+1}, s49, 0"); A(f"  s_mov_b32 s{SWO+2}, {(180 if WOM == 2 else 48)*1280}"); A(f"  s_mov_b32 s{SWO+3}, 0x20000")
    def setup2():
        if not (XP & 1 and XPO <= DA + 1): setup_swo()
        if not EARLY: setup_sws()
        A(f"  s_mul_i32 s{sTMP}, s{sB}, 1280")
        A(f"  s_add_u32 s{SOUT}, s50, s{sTMP}"); A(f"  s_addc_u32 s{SOUT+1}, s51, 0"); A(f"  s_mov_b32 s{SOUT+2}, 1280"); A(f"  s_mov_b32 s{SOUT+3}, 0x20000")
        A(f"  s_mov_b32 s{SDBG}, s52"); A(f"  s_mov_b32 s{SDBG+1}, s53"); A(f"  s_mov_b32 s{SDBG+2}, 256"); A(f"  s_mov_b32 s{SDBG+3}, 0x20000")
        A(f"  s_mov_b32 s{sLOG}, {hex(f2u(LOG2E))}"); A(f"  s_mov_b32 s{sSC}, {hex(f2u(SCALE))}")
        A(f"  s_mov_b32 s{sPLO}, 0x01000100"); A(f"  s_mov_b32 s{sPHI}, 0x03020302"); A(f"  s_mov_b32 s{sHI16}, 0xffff0000")
        A(f"  v_mul_u32_u24 v{VWO}, {(1 if WOM else 12)*1280}, v4"); A(f"  v_add_u32 v{VWO}, v{VWO}, v8"); A(f"  v_add_u32 v{VWO}, v{VWO}, v1")
        A("  v_and_b32 v6, 1, v0"); A("  v_lshlrev_b32 v6, 4, v6"); A("  v_mov_b32 v7, 0xffff"); A("  v_lshlrev_b32 v7, v6, v7")
        A("  v_bfe_u32 v6, v0, 1, 2")
        for k in range(4):
            A(f"  v_cmp_eq_u32 vcc, {k}, v6"); A(f"  v_cndmask_b32 v{MK+k}, 0, v7, vcc")
        A(f"  v_mov_b32 v{VZ}, 0")
        A(f"  ds_write_b32 v{VZ}, v{VZ} offset:{ML+32}")
        if vers:
            C("load balancing only: progress counters in d_ws, zeroed here by this launch; they pick the prefetch depth")
            lg = GN.bit_length() - 1
            if not EARLY: setup_spg()
            A(f"  s_getreg_b32 s{sBASE}, hwreg(HW_REG_XCC_ID)"); A(f"  s_and_b32 s{sBASE}, s{sBASE}, 1")
            A(f"  s_mul_i32 s{sBASE}, s{sBASE}, {round(2*PB*64)}"); A(f"  s_add_u32 s{sBASE}, s{sBASE}, {round((BASE+0.5-PB)*64)}")
            A(f"  v_mov_b32 v58, s{sBASE}"); A(f"  v_mov_b32 v59, s{sBASE}"); A(f"  ds_write_b64 v{VZ}, v[58:59] offset:{FL+8}")
            A(f"  ds_write_b32 v{VZ}, v{VZ} offset:{FL+16}")
            if not ZL and not EARLY: zero_ticks()
            A(f"  s_and_b32 s100, s2, {GN-1}")
        for r in range(12): A(f"  v_mov_b32 v{ACC+r}, 0")

    class Ld: pass
    def mk(kind, step, t, dstp, dst, text, pre=()):
        l = Ld(); l.kind, l.step, l.t, l.dstp, l.dst, l.text, l.pre = kind, step, t, dstp, dst, text, list(pre); l.done = False; return l
    def kv_load(n, isv, t, loop=False):
        if not isv and n < NBV: p, d = "v", BK + 12*n + 4*t
        elif not isv and n < NBIG: p, d = "a", 12*(n - NBV) + 4*t
        else: p, d = "v", RG + 12*(n % 4) + 4*t
        pre = []
        if n < 2:
            so = f"s{sL0 + n}"; va = VL2 if t == 2 else VL0
        else:
            so = f"s{sOFF}"; va = VA2 if t == 2 else VA0
            if t == 0:
                if n % 2 == 0: pre += [f"  s_and_b32 s{sOFF}, s{sT}, 0xffff", f"  s_mul_i32 s{sOFF}, s{sOFF}, 384"]
                else: pre += [f"  s_lshr_b32 s{sOFF}, s{sT}, 16", f"  s_mul_i32 s{sOFF}, s{sOFF}, 384"]
        if n % 2 == 1 and t == (2 if n == 1 else 1) and n + 1 < 128:
            k = (n + 1 - 2) // 2
            if loop: pre += [f"  v_readlane_b32 s{sT}, v{VT}, s{sIDX}", f"  s_add_u32 s{sIDX}, s{sIDX}, 1"]
            else: pre += [f"  v_readlane_b32 s{sT}, v{VT}, {k}"]
        off = f" offset:128" if t == 1 else ""
        txt = f"  buffer_load_dwordx4 {v4(d,p)}, v{va}, {srd(SV if isv else SK)}, {so} offen{off} {vflags if (isv and vflags is not None) else kvflags}"
        return mk("v" if isv else "k", n, t, p, d, txt, pre)
    def wq_load(i):
        s, t = divmod(i, 3); d = 12*NBA + 4*(i % ((256 - 12*NBA)//4))
        pre = [f"  s_mov_b32 s{sWOFF}, {((64*(s//2) + s%2) if WQM else s)*12288}"] if t == 0 else []
        off = f" offset:{128*t}" if t else ""
        return mk("wq", s, t, "a", d, f"  buffer_load_dwordx4 {v4(d,'a')}, v{VWQ}, {srd(SWQ)}, s{sWOFF} offen{off} {wflags if wqflags is None else wqflags}", pre)
    def wo_reg(i): return (12*NBA + 4*i) % 240
    def wo_load(i):
        rb, tp = divmod(i, 5); d = wo_reg(i)
        pre = [f"  s_mov_b32 s{sWOFF}, {(rb//3)*3840}"] if i % 15 == 0 else []
        o = (rb % 3)*1280 + 256*tp
        if WOM:
            pre = [f"  s_mov_b32 s{sWOFF}, {rb*5120*(4 if WOM == 2 else 1)}"] if tp == 0 else []
            o = 256*tp
        off = f" offset:{o}" if o else ""
        return mk("wo", rb, tp, "a", d, f"  buffer_load_dwordx4 {v4(d,'a')}, v{VWO}, {srd(SWO)}, s{sWOFF} offen{off} {wflags}", pre)
    def selector(src, sel=SEL):
        for k in range(4): A(f"  v_and_b32 v{sel+k}, v{src}, v{MK+k}")
    st = dict(comp=-1, hw=-1, loop=False)
    def consume(l):
        l.done = True
        if l.kind == "wq":
            if l.t == 0:
                A(f"  v_perm_b32 v{VP}, v{Q + l.step//2}, v{Q + l.step//2}, s{sPHI if l.step % 2 else sPLO}")
                selector(VP)
            A(f"  v_mfma_f32_16x16x32_bf16 {v4(ACC+4*l.t)}, {v4(SEL)}, {v4(l.dst,l.dstp)}, {v4(ACC+4*l.t)}")
        elif l.kind == "k":
            src = l.dst
            if l.dstp == "a":
                src = TA + 4*l.t
                for r in range(4): A(f"  v_accvgpr_read_b32 v{src+r}, a{l.dst+r}")
            for r in range(4):
                c = "0" if (l.t == 0 and r == 0) else f"v{VS}"
                A(f"  v_dot2_f32_bf16 v{VS}, v{src+r}, v{Q+4*l.t+r}, {c}")
            if l.t == 2:
                A(f"  v_add_f32_dpp v{VS}, v{VS}, v{VS} quad_perm:[1,0,3,2] {DPP}")
                A(f"  v_add_f32_dpp v{VS}, v{VS}, v{VS} quad_perm:[2,3,0,1] {DPP}")
                A(f"  v_add_f32_dpp v{VS}, v{VS}, v{VS} row_half_mirror {DPP}")
                A(f"  v_cvt_pk_bf16_f32 v{VS}, v{VS}, v{VS}"); A(f"  v_and_b32 v{VS}, s{sHI16}, v{VS}")
                A(f"  v_mul_f32 v{VS}, s{sSC}, v{VS}")
                dst = VTMP if l.step < NBIG else SR + l.step % 4
                A(f"  v_cvt_pk_bf16_f32 v{VS}, v{VS}, v{VS}"); A(f"  v_and_b32 v{dst}, s{sHI16}, v{VS}")
                if not st["loop"]: A(f"  ds_write_b32 v{VSA}, v{dst} offset:{4*l.step}")
        elif l.kind == "v":
            sel = SEL if l.step % 2 == 0 else SEL2
            if l.t == 0:
                if l.step % 4 == 0 and not st["loop"]: A("  s_waitcnt lgkmcnt(0)")
                selector(PR + l.step % 4, sel)
                if l.step % 4 == 3:
                    if st["loop"]: A(f"  ds_read_b128 {v4(PR)}, v{VSL}"); A(f"  v_add_u32 v{VSL}, 16, v{VSL}")
                    elif l.step < 127: A(f"  ds_read_b128 {v4(PR)}, v{VSA} offset:{4*(l.step+1)}")
            A(f"  v_mfma_f32_16x16x32_bf16 {v4(ACC+4*l.t)}, {v4(sel)}, {v4(l.dst,l.dstp)}, {v4(ACC+4*l.t)}")

    S = []; owner = {}
    def wait(n, ne=None):
        ne = n if ne is None else min(n, ne)
        c = len(S) - 1 - ne
        if c > st["hw"]:
            A(f"  s_waitcnt vmcnt({ne})"); st["hw"] = c
        st["comp"] = max(st["comp"], len(S) - 1 - n)
    def issue(l):
        key = (l.dstp, l.dst)
        if key in owner: assert owner[key].done, (l.kind, l.step, l.t, owner[key].kind, owner[key].step)
        owner[key] = l
        for p in l.pre: A(p)
        A(l.text); S.append(l)
    cptr = [0]; ready = dict(k=False, v=False); backlog = []
    def drain():
        while cptr[0] <= st["comp"]:
            l = S[cptr[0]]
            if l.kind == "k" and l.step < NBIG: pass
            elif l.kind in ("k", "v"):
                if not ready[l.kind]: break
                consume(l)
                if l.t == 2:
                    for _ in range(BR):
                        if backlog:
                            for x in backlog.pop(0): consume(x)
            elif l.kind == "wq": consume(l)
            elif l.kind == "x": l.done = True
            cptr[0] += 1
    kv = [kv_load(n, isv, t) for isv in (0, 1) for n in range(128) for t in range(3)]
    for n in list(range(NBV, NBIG)) + list(range(NBV)): backlog.append(kv[3*n:3*n+3])
    K = dict(i=0, wi=0, cnt=0, wo=False)
    def kwait(dk):
        dk = math.floor(dk) if len(S) % 2 else math.ceil(dk)
        pos = [i for i, l in enumerate(S) if l.kind in ("k", "v")]
        if len(pos) >= dk: wait(len(S) - 1 - pos[-dk])
    def pump(d, de=None, dk=None):
        if dk: kwait(dk)
        else: wait(d - 1, None if de is None else de - 1)
        issue(kv[K["i"]]); K["i"] += 1; drain()
        if K["wo"]:
            K["cnt"] += 1
            while K["wi"] < 60 and K["wi"] + WOB - 1 < K["cnt"]*wo_per_step//6:
                ls = [wo_load(K["wi"] + u) for u in range(WOB)]
                if any((l.dstp, l.dst) in owner and not owner[(l.dstp, l.dst)].done for l in ls): break
                if WOB == 1 and not dk: wait(d - 1)
                for l in ls: issue(l); l.done = True; K["wi"] += 1
                drain()

    C("q = x[b] @ wq[:, h]: each wave takes 160 rows of wq; K steps are prefetched into registers meanwhile")
    X = [mk("x", 0, 0, "v", Q, f"  buffer_load_dwordx4 {v4(Q)}, v{VS}, {srd(SX)}, 0 offen"),
           mk("x", 0, 1, "v", Q+4, f"  buffer_load_dwordx4 {v4(Q+4)}, v{VS}, {srd(SX)}, 0 offen offset:16"),
           mk("x", 0, 2, "v", Q+8, f"  buffer_load_dwordx2 v[{Q+8}:{Q+9}], v{VS}, {srd(SX)}, 0 offen offset:32")]
    if WQM: X = [mk("x", 0, k, "v", Q+k, f"  buffer_load_dword v{Q+k}, v{VS}, {srd(SX)}, 0 offen" + (f" offset:{128*k}" if k else "")) for k in range(10)]
    seq = []
    nb = 3*NBIG; ki = 0
    while ki < WQ0: seq.append(kv[ki]); ki += 1
    for i in range(60):
        if WQM and i % 6 == 0: X[i//6].nowait = True; seq.append(X[i//6])
        elif i == 0: seq += X
        if i < 60 - NOWQ:
            seq.append(wq_load(i))
            if i % WQB: seq[-1].nowait = True
        if (i + 1) % WQB == 0:
            while ki < WQ0 + (i+1)*((WQN or nb) - WQ0)//60: seq.append(kv[ki]); ki += 1
    K["i"] = ki
    did1 = False
    for j, l in enumerate(seq):
        if EARLY and j == EARLY:
            setup_sws()
            if EP == 2: sentinel()
            if vers: A(f"  v_mov_b32 v{VZ}, 0"); setup_spg(); zero_ticks()
        if XP & 2 and j == XPQ:
            C("touch this workgroup's eighth of the wave's wq slice once, so the slice reaches the shared L2 early (speed only)")
            A("  v_min_u32 v255, 59, v0"); A("  v_mul_u32_u24 v254, 43, v255"); A("  v_lshrrev_b32 v254, 7, v254"); A(f"  v_mul_u32_u24 v253, {12288-384}, v254"); A("  v_lshl_add_u32 v255, v255, 7, v253")
            A(f"  s_mul_i32 s74, s{sB}, {20*12288}")
            for o in (0, 64)[:XPN]: issue(mk("x", 0, 0, "v", 253 + o//64, f"  buffer_load_dword v{253 + o//64}, v255, {srd(SWQ)}, s74 offen" + (f" offset:{o}" if o else "") + XPF))
        if XP & 1 and j == XPO:
            C("touch this workgroup's eighth of the wave's wo slice once, so the slice reaches the shared L2 early (speed only)")
            if XPO <= DA + 1: setup_swo()
            A("  v_min_u32 v255, 59, v0"); A("  v_lshlrev_b32 v255, 7, v255"); A(f"  s_mul_i32 s74, s{sB}, 7680")
            for o in (0, 64)[:XPN]: issue(mk("x", 0, 0, "v", 251 + o//64, f"  buffer_load_dword v{251 + o//64}, v255, {srd(SWO)}, s74 offen" + (f" offset:{o}" if o else "") + XPF))
        if not did1 and (j == DA + 1 or any("readlane" in p for p in l.pre)): setup1(); did1 = True
        if j == DA + 1:
            setup2()
            if S2: stamp(S2, 2)
        if ZL and j == ZL and vers: zero_ticks()
        if EP == 2 and not EARLY and j == (SPOS or max(ZL, DA + 1) + 4):
            sentinel()
        if KA:
            if l.kind == "k" and j > DA: kwait(KA)
        elif j > DA and not getattr(l, "nowait", False): wait(DA - 1)
        if j in SP: stamp(SP.index(j) + 1, 2)
        issue(l); drain()
    lastwq = max(j for j, l in enumerate(S) if l.kind == "wq")
    while st["comp"] < lastwq: pump(DA, dk=KA)
    A(f"  v_lshlrev_b32 v56, 1, v1")
    A(f"  v_bfe_u32 v57, v0, 4, 1"); A(f"  v_lshl_add_u32 v56, v57, 4, v56")
    A(f"  v_mul_u32_u24 v57, 768, v3"); A(f"  v_add_u32 v56, v56, v57")
    A(f"  s_mul_i32 s{sTMP}, s{sW}, 1536"); A(f"  v_add_u32 v56, s{sTMP}, v56")
    A("  s_mov_b32 exec_lo, 0x00ff00ff"); A("  s_mov_b32 exec_hi, 0xff00ff00")
    for t in range(3): A(f"  ds_write_b128 v56, {v4(ACC+4*t)} offset:{QP + 256*t}")
    A("  s_mov_b64 exec, -1")
    A("  v_lshlrev_b32 v57, 2, v0")
    A("  s_waitcnt lgkmcnt(0)"); A("  s_barrier")
    TQ = 232
    for k in range(3):
        for p in range(8): A(f"  ds_read_b32 v{TQ + 8*k + p}, v57 offset:{QP + 768*p + 256*k}")
    for r in range(12): A(f"  v_mov_b32 v{ACC+r}, 0")
    while K["i"] < (WQN or 3*NBIG) + 11: pump(DA, dk=KA)
    A(f"  s_mul_i32 s{sTMP}, s{sW}, 384"); A(f"  v_lshlrev_b32 v58, 1, v0"); A(f"  v_add_u32 v58, s{sTMP}, v58")
    A(f"  v_add_u32 v59, s{sTMP}, v1")
    A("  s_waitcnt lgkmcnt(0)")
    for k in range(3):
        for p in range(1, 8): A(f"  v_add_f32 v{TQ+8*k}, v{TQ+8*k}, v{TQ+8*k+p}")
        A(f"  v_cvt_pk_bf16_f32 v{TQ+8*k}, v{TQ+8*k}, v{TQ+8*k}")
        A(f"  ds_write_b16 v58, v{TQ+8*k} offset:{QB + 128*k}")
    A(f"  v_add_u32 v60, v59, v8"); A(f"  v_add_u32 v61, v59, v9")
    A("  s_waitcnt lgkmcnt(0)")
    A(f"  ds_read_b128 {v4(Q)}, v60 offset:{QB}"); A(f"  ds_read_b128 {v4(Q+4)}, v60 offset:{QB+128}"); A(f"  ds_read_b128 {v4(Q+8)}, v61 offset:{QB}")
    A(f"  s_mul_i32 s{sTMP}, s{sW}, 4224"); A(f"  s_add_u32 s{sTMP}, s{sTMP}, {SC}")
    A(f"  v_mul_u32_u24 v{VSA}, 528, v2"); A(f"  v_add_u32 v{VSA}, s{sTMP}, v{VSA}")
    A("  s_waitcnt lgkmcnt(0)")
    stamp(1)
    C("pass 1: scores of this wave's 1024 keys -> LDS; wo slice -> AGPRs")
    ready["k"] = True
    drain()
    info = {}
    def run_loop(kind, nm, it0, first):
        nonlocal L, A
        mark = len(S) - 1
        while True:
            pump(D, DB)
            nxt = S[len(S) - D]
            if len(S) - D > mark and nxt.kind == kind and nxt.t == 0 and nxt.step % 4 == 0 and not backlog and cptr[0] == len(S) - D: break
        ki = K["i"]; n0 = nxt.step
        niter = (128 - n0)//4 - 1
        nread = [l for l in kv[ki:ki+12] if any("readlane" in p for p in l.pre)]
        assert len(nread) == 2
        k0 = (nread[0].step + 1 - 2)//2
        A(f"  s_mov_b32 s{sIDX}, {k0}")
        A(f"  v_add_u32 v{VSL}, {4*(n0-4) if kind == 'k' else 4*(n0+4)}, v{VSA}")
        if first:
            A(f"  s_mov_b32 s{sIT}, 0")
            if vers:
                A(f"  v_mov_b32 v58, s{sBASE}"); A(f"  v_mov_b32 v59, s{sBASE}"); A(f"  v_mov_b32 v{VPG}, {GN//2}")
                A("@TICKS")
                A(f"  s_lshl_b64 s[42:43], s[40:41], 1")
                A(f"  v_cmp_eq_u32 vcc, 0, v0"); A(f"  v_cndmask_b32 v{VPL}, 0, {2*KW}, vcc")
                A(f"  v_mov_b32 v{VPS}, {-5*KW}"); A(f"  v_lshlrev_b32 v57, 2, v0")
        pre = L; L = []; A = L.append
        st["loop"] = True; st["hw"] = st["comp"]
        for j in range(12):
            o = kv[ki + j]
            l = kv_load(o.step, o.kind == "v", o.t, loop=True)
            assert o.kind == kind
            if vers and j == 10:
                A(f"  ds_read_b64 v[58:59], v{VZ} offset:{FL+8}")
                A(f"  ds_add_rtn_u32 v{VPS}, v57, v{VPL} offset:{FL+16}")
            wait(D - 1); issue(l)
            if kind == "k" and j == 0: A(f"  ds_write_b128 v{VSL}, {v4(SR)}"); A(f"  v_add_u32 v{VSL}, 16, v{VSL}")
            drain()
        A(f"  s_add_u32 s{sIT}, s{sIT}, 1")
        st["loop"] = False
        core = pad(L)
        check_loop(core)
        vv = vers or [D]
        body = [f"L_disp{nm}:", "  s_waitcnt lgkmcnt(0)"]
        if vers:
            body += [f"  v_readfirstlane_b32 s{sD}, v58",
                f"  s_bitcmp1_b64 s[40:41], s{sIT}", f"  s_cbranch_scc1 L_duty{nm}", f"  s_bitcmp1_b64 s[42:43], s{sIT}", f"  s_cbranch_scc1 L_proc{nm}", f"L_sel{nm}:",
                f"  v_readfirstlane_b32 s{sTMP}, v{VPS}", f"  s_mul_i32 s{sTMP2}, s{sIT}, {8*KW}", f"  s_sub_i32 s{sTMP}, s{sTMP}, s{sTMP2}",
                f"  s_add_i32 s{sD}, s{sD}, s{sTMP}", f"  s_add_i32 s{sD}, s{sD}, {5*KW}",
                f"  s_ashr_i32 s{sD}, s{sD}, 6", f"  s_max_i32 s{sD}, s{sD}, 0", f"  s_min_i32 s{sD}, s{sD}, {len(vers)-1}"]
            R = [f"L_duty{nm}:", f"  v_mov_b32 v{VPG}, 1", f"  s_mul_i32 s{sTMP}, s{sIT}, {LST}",
                 f"  s_add_u32 s{sTMP2}, s{sIT}, 17", f"  s_mul_i32 s{sTMP2}, s{sTMP2}, s100", f"  s_add_u32 s{sTMP2}, s{sTMP2}, s101",
                 f"  s_and_b32 s{sTMP2}, s{sTMP2}, {256//GN-1}", f"  s_mul_i32 s{sTMP2}, s{sTMP2}, {64*LST+256}", f"  s_add_u32 s{sTMP}, s{sTMP}, s{sTMP2}",
                 "  s_mov_b64 exec, 1", f"  buffer_atomic_add v{VPG}, v{VZ}, {srd(SPG)}, s{sTMP} offen sc0 sc1", "  s_mov_b64 exec, -1", f"  s_branch L_sel{nm}"]
            rare.extend(pad(R))
            R = [f"L_proc{nm}:", f"  v_readfirstlane_b32 s{sTMP}, v{VPG}", f"  v_readfirstlane_b32 s{sBASE}, v59",
                 f"  s_min_u32 s{sTMP}, s{sTMP}, {GN-1}", f"  s_lshl_b32 s{sTMP}, s{sTMP}, 1", f"  s_sub_i32 s{sTMP}, s{sTMP}, {GN-1}",
                 f"  s_mul_i32 s{sTMP2}, s{sTMP}, {KI}", f"  s_add_i32 s{sBASE}, s{sBASE}, s{sTMP2}",
                 f"  s_max_i32 s{sBASE}, s{sBASE}, {round(ILO*64)}", f"  s_min_i32 s{sBASE}, s{sBASE}, {round(IHI*64)}",
                 f"  s_mul_i32 s{sTMP}, s{sTMP}, {KP}", f"  s_add_i32 s{sD}, s{sTMP}, s{sBASE}",
                 f"  v_mov_b32 v60, s{sD}", f"  v_mov_b32 v61, s{sBASE}", f"  ds_write_b64 v{VZ}, v[60:61] offset:{FL+8}", f"  s_branch L_sel{nm}"]
            rare.extend(pad(R))
            for i in range(1, len(vv)):
                body += [f"  s_cmp_eq_u32 s{sD}, {i}", f"  s_cbranch_scc1 L_{nm}{i}"]
        for i, d in enumerate(vv):
            assert d <= D
            body.append(f"L_{nm}{i}:")
            c = 0
            for ln in core:
                if ln == f"  s_waitcnt vmcnt({D-1})":
                    dd = math.floor(d) if c % 2 == 0 else math.ceil(d); c += 1
                    ln = f"  s_waitcnt vmcnt({dd-1})"
                body.append(ln)
            assert c == 12
            body += [f"  s_cmp_lt_u32 s{sIT}, {it0 + niter}", f"  s_cbranch_scc1 L_disp{nm}"]
            if i < len(vv) - 1: body.append(f"  s_branch L_tail{nm}")
        body.append(f"L_tail{nm}:")
        L = pre + body; A = L.append
        K["i"] = ki + 12*niter
        for l in S[cptr[0]:]: l.step += 4*(niter - 1)
        info[nm] = (n0, niter)
        return niter
    if not WOV:
        K["wo"] = True
        while K["wi"] < 60: pump(DT, dk=KT)
    stamp(2)
    nK = run_loop("k", "k", 0, True)
    A(f"  ds_write_b128 v{VSL}, {v4(SR)}")
    while not kv[383].done: pump(DB)
    C("exact max of the wave's scores, p = exp(s - max) (bf16, duplicated) back to LDS, sum published for the final combine")
    T = BK
    A(f"  v_lshl_add_u32 v6, v1, 2, v{VSA}")
    A("  s_waitcnt lgkmcnt(0)")
    for k in range(4): A(f"  ds_read_b128 {v4(T+4*k)}, v6 offset:{16*k}")
    pump(DB)
    A("  s_waitcnt lgkmcnt(0)")
    A(f"  v_max3_f32 v{VM}, v{T}, v{T+1}, v{T+2}"); A(f"  v_max3_f32 v{VTMP}, v{T+3}, v{T+4}, v{T+5}")
    for k in range(6, 14, 4):
        A(f"  v_max3_f32 v{VM}, v{T+k}, v{T+k+1}, v{VM}"); A(f"  v_max3_f32 v{VTMP}, v{T+k+2}, v{T+k+3}, v{VTMP}")
    A(f"  v_max3_f32 v{VM}, v{T+14}, v{T+15}, v{VM}"); A(f"  v_max_f32 v{VM}, v{VM}, v{VTMP}")
    def xl(op, r):
        for m in ("quad_perm:[1,0,3,2]", "quad_perm:[2,3,0,1]", "row_half_mirror", "row_mirror"): A(f"  {op}_dpp v{r}, v{r}, v{r} {m} {DPP}")
        for k in range(4): A(f"  v_readlane_b32 s{74+k}, v{r}, {16*k}")
        A(f"  v_mov_b32 v{r}, s74")
        for k in range(1, 4): A(f"  {op} v{r}, s{74+k}, v{r}")
    xl("v_max_f32", VM)
    A(f"  v_mul_f32 v{VNML}, s{sLOG}, v{VM}"); A(f"  v_sub_f32 v{VNML}, 0, v{VNML}")
    pump(DB)
    for k in range(16): A(f"  v_fma_f32 v{T+k}, v{T+k}, s{sLOG}, v{VNML}")
    for k in range(16): A(f"  v_exp_f32 v{T+k}, v{T+k}")
    for k in range(16): A(f"  v_cvt_pk_bf16_f32 v{T+16+k}, v{T+k}, v{T+k}")
    for k in range(4): A(f"  ds_write_b128 v6, {v4(T+16+4*k)} offset:{16*k}")
    A(f"  ds_read_b128 {v4(PR)}, v{VSA}")
    pump(DB)
    for s in (8, 4, 2):
        for k in range(s): A(f"  v_add_f32 v{T+k}, v{T+k}, v{T+k+s}")
    A(f"  v_add_f32 v{VLS}, v{T}, v{T+1}")
    xl("v_add_f32", VLS)
    A(f"  s_lshl_b32 s{sTMP}, s{sW}, 3"); A(f"  v_mov_b32 v6, s{sTMP}"); A(f"  v_mov_b32 v7, 1")
    A("  s_mov_b64 exec, 1")
    A(f"  ds_write_b64 v6, v[{VNML}:{VLS}] offset:{ML}")
    A(f"  ds_add_u32 v{VZ}, v7 offset:{ML+32}")
    A("  s_mov_b64 exec, -1")
    stamp(3)
    C("pass 2: o += p * V")
    ready["v"] = True
    drain()
    if WOV:
        K["wo"] = True
        while K["wi"] < 60: pump(DT, dk=KT)
    nV = run_loop("v", "v", nK, False)
    E = BK
    A("L_mw:")
    A(f"  ds_read_b32 v6, v{VZ} offset:{ML+32}"); A(f"  ds_read_b128 {v4(E)}, v{VZ} offset:{ML}"); A(f"  ds_read_b128 {v4(E+4)}, v{VZ} offset:{ML+16}")
    A("  s_waitcnt lgkmcnt(0)")
    A(f"  v_readfirstlane_b32 s{sTMP}, v6"); A(f"  s_cmp_lg_u32 s{sTMP}, 4"); A("  s_cbranch_scc1 L_mw")
    pump(D, DE)
    A(f"  v_min_f32 v{VTMP}, v{E}, v{E+2}"); A(f"  v_min3_f32 v{VTMP}, v{E+4}, v{E+6}, v{VTMP}")
    for w in range(4): A(f"  v_sub_f32 v{E+2*w}, v{VTMP}, v{E+2*w}"); A(f"  v_exp_f32 v{E+2*w}, v{E+2*w}")
    A(f"  v_sub_f32 v{VF}, v{VTMP}, v{VNML}"); A(f"  v_exp_f32 v{VF}, v{VF}")
    A(f"  v_mul_f32 v{VP}, v{E}, v{E+1}")
    for w in range(1, 4): A(f"  v_fma_f32 v{VP}, v{E+2*w}, v{E+2*w+1}, v{VP}")
    A(f"  v_rcp_f32 v{VP}, v{VP}"); A(f"  v_mul_f32 v{VF}, v{VF}, v{VP}")
    pump(D, DE)
    A(f"  v_lshlrev_b32 v57, 8, v3"); A(f"  v_add_u32 v57, v56, v57")
    A(f"  v_lshl_add_u32 v58, v9, 1, v56")
    A(f"  v_and_b32 v59, 15, v0"); A(f"  v_min_u32 v59, 11, v59")
    if WOM: A(f"  v_lshl_add_u32 v59, v59, {4 if WOM == 2 else 2}, v4")
    else: A(f"  v_mul_u32_u24 v60, 12, v4"); A(f"  v_add_u32 v59, v59, v60")
    A(f"  s_mul_i32 s{sTMP}, s{sW}, {16 if WOM == 2 else 192}"); A(f"  v_lshlrev_b32 v59, 2, v59"); A(f"  v_add_u32 v59, s{sTMP}, v59")
    A(f"  v_lshlrev_b32 v60, 1, v1"); A(f"  v_bfe_u32 v61, v0, 4, 1"); A(f"  v_lshl_add_u32 v60, v61, 4, v60"); A(f"  v_lshl_add_u32 v60, v3, 8, v60")
    A(f"  s_mul_i32 s{sTMP}, s{sW}, 2560"); A(f"  v_add_u32 v60, s{sTMP}, v60")
    A(f"  s_lshl_b32 s{sTMP}, s{sW}, 10"); A(f"  v_lshlrev_b32 v61, 4, v0"); A(f"  v_add_u32 v61, s{sTMP}, v61")
    def ticket():
        A(f"  s_cmp_lg_u32 s{sW}, {TW}"); A("  s_cbranch_scc1 L_notk")
        A(f"  s_lshl_b32 s{sTMP}, s{sB}, 5"); A(f"  v_mov_b32 v{VPG}, 1")
        A("  s_mov_b64 exec, 1")
        A(f"  buffer_atomic_add v{VPG}, v{VZ}, {srd(SDBG)}, s{sTMP} offen sc0 sc1")
        A("  s_mov_b64 exec, -1")
        A("L_notk:")
    if EP == 2:
        A(f"  v_lshlrev_b32 v61, 4, v0"); A(f"  s_mul_i32 s{sTMP}, s{sW}, 640"); A(f"  v_add_u32 v62, s{sTMP}, v61")
        A(f"  s_mul_i32 s{sTMP}, s{sW}, 5120"); A(f"  v_add_u32 v{VPL}, s{sTMP}, v61")
    while K["i"] < 768:
        if EP == 2 and K["i"] == 768 - TP: ticket()
        pump(D, DE)
    for n in range(D - 1, -1, -1):
        if EP == 2 and TP == n - D + 1: ticket()
        wait(n); drain()
    assert cptr[0] == len(S)
    stamp(4)
    C("combine the waves, project with the wo slice, reduce the 32 heads of batch b (last arriver)")
    A("  s_mov_b32 exec_lo, 0x00ff00ff"); A("  s_mov_b32 exec_hi, 0xff00ff00")
    for t in range(3):
        for r in range(4): A(f"  v_mul_f32 v{ACC+4*t+r}, v{VF}, v{ACC+4*t+r}")
        A(f"  ds_write_b128 v{58 if t == 2 else 57}, {v4(ACC+4*t)} offset:{OP + (256 if t == 1 else 0)}")
    if EP == 2:
        A(f"  s_cmp_eq_u32 s{sW}, {TW}"); A("  s_cselect_b64 exec, 1, 0")
        A(f"  ds_write_b32 v{VZ}, v{VPG} offset:{FL}")
    A("  s_mov_b64 exec, -1")
    A("  s_waitcnt lgkmcnt(0)"); A("  s_barrier")
    stamp(1, 1)
    for p in range(8): A(f"  ds_read_b32 v{E+p}, v59 offset:{OP+768*p}")
    if EP == 2: A(f"  ds_read_b32 v{VPG}, v{VZ} offset:{FL}")
    OA = RG
    A("  s_waitcnt lgkmcnt(0)")
    for s in (4, 2, 1):
        for k in range(s): A(f"  v_add_f32 v{E+k}, v{E+k}, v{E+k+s}")
    A(f"  v_cvt_pk_bf16_f32 v{VS}, v{E}, v{E}")
    stamp(2, 1)
    sels = [SEL, SEL2, ACC]
    def osel(rb):
        for k in range(4): A(f"  v_and_b32_dpp v{sels[rb%3]+k}, v{VS}, v{MK+k} row_newbcast:{rb} {DPP}")
    osel(0)
    for rb in range(12):
        for tp in range(5):
            A(f"  v_mfma_f32_16x16x32_bf16 {v4(OA+4*tp)}, {v4(sels[rb%3])}, {v4(wo_reg(rb*5+tp),'a')}, {v4(OA+4*tp) if rb else 0}")
            if SPR:
                if tp < 4 and rb < 11: A(f"  v_and_b32_dpp v{sels[(rb+1)%3]+tp}, v{VS}, v{MK+tp} row_newbcast:{rb+1} {DPP}")
            elif tp == 0 and rb < 11: osel(rb + 1)
    A("  s_mov_b32 exec_hi, 0")
    for tp in range(5): A(f"  ds_write_b128 v60, {v4(OA+4*tp)} offset:{FP+512*tp}")
    A("  s_mov_b64 exec, -1")
    A("  s_waitcnt lgkmcnt(0)"); A("  s_barrier")
    stamp(3, 1)
    if EP == 1:
        A(f"  s_cmp_eq_u32 s{sW}, 3"); A("  s_cbranch_scc1 L_skipst")
        for w in range(4): A(f"  ds_read_b128 {v4(E+4*w)}, v61 offset:{FP+2560*w}")
        A(f"  s_mul_i32 s{sTMP}, s{sH}, 2560")
        A(f"  v_cmp_gt_u32 vcc, 2560, v61")
        A("  s_waitcnt lgkmcnt(0)")
        for r in range(4):
            A(f"  v_add_f32 v{E+r}, v{E+r}, v{E+4+r}"); A(f"  v_add_f32 v{E+8+r}, v{E+8+r}, v{E+12+r}"); A(f"  v_add_f32 v{E+r}, v{E+r}, v{E+8+r}")
        A("  s_mov_b64 exec, vcc")
        A(f"  buffer_store_dwordx4 {v4(E)}, v61, {srd(SWS)}, s{sTMP} offen sc1")
        A("  s_mov_b64 exec, -1")
        A("  s_waitcnt vmcnt(0)")
        A("L_skipst:")
        stamp(5)
        A("  s_barrier")
        A(f"  s_cmp_lg_u32 s{sW}, 0"); A("  s_cbranch_scc1 L_skipat")
        A(f"  s_lshl_b32 s{sTMP}, s{sB}, 5")
        A("  v_mov_b32 v60, 1")
        A("  s_mov_b64 exec, 1")
        A(f"  buffer_atomic_add v60, v{VZ}, {srd(SDBG)}, s{sTMP} offen sc0 sc1")
        A("  s_waitcnt vmcnt(0)")
        A(f"  ds_write_b32 v{VZ}, v60 offset:{FL}")
        A("  s_mov_b64 exec, -1")
        A("  s_waitcnt lgkmcnt(0)")
        A("L_skipat:")
        A("  s_barrier")
        A(f"  ds_read_b32 v60, v{VZ} offset:{FL}")
        A(f"  v_lshlrev_b32 v57, 4, v0")
        A("  s_waitcnt lgkmcnt(0)")
        A(f"  v_readfirstlane_b32 s{sTMP}, v60")
        A(f"  s_cmp_lg_u32 s{sTMP}, 31"); A("  s_cbranch_scc1 L_fin")
        A(f"  s_mul_i32 s{sTMP}, s{sW}, 20480")
        for k in range(20):
            if k and k % 4 == 0: A(f"  s_add_u32 s{sTMP}, s{sTMP}, 4096")
            o = (k % 4)*1024
            A(f"  buffer_load_dwordx4 {v4(E+4*k)}, v57, {srd(SWS)}, s{sTMP} offen" + (f" offset:{o}" if o else "") + " sc1")
        A(f"  s_mul_i32 s{sTMP}, s{sW}, 5120"); A(f"  v_add_u32 v57, s{sTMP}, v57")
        for k in range(5, 20):
            A(f"  s_waitcnt vmcnt({19-k})")
            for r in range(4): A(f"  v_add_f32 v{E+4*(k%5)+r}, v{E+4*(k%5)+r}, v{E+4*k+r}")
        for k in range(5): A(f"  ds_write_b128 v57, {v4(E+4*k)} offset:{RP+1024*k}")
        A("  s_waitcnt lgkmcnt(0)"); A("  s_barrier")
        A(f"  s_cmp_eq_u32 s{sW}, 3"); A("  s_cbranch_scc1 L_fin")
        for p in range(8): A(f"  ds_read_b128 {v4(E+4*p)}, v61 offset:{RP+2560*p}")
        A(f"  v_lshrrev_b32 v61, 1, v61")
        A("  s_waitcnt lgkmcnt(0)")
        for s in (4, 2, 1):
            for p in range(s):
                for r in range(4): A(f"  v_add_f32 v{E+4*p+r}, v{E+4*p+r}, v{E+4*(p+s)+r}")
        A(f"  v_cvt_pk_bf16_f32 v{E}, v{E}, v{E+1}"); A(f"  v_cvt_pk_bf16_f32 v{E+1}, v{E+2}, v{E+3}")
        A(f"  buffer_store_dwordx2 v[{E}:{E+1}], v61, {srd(SOUT)}, 0 offen")
        A("  s_waitcnt vmcnt(0)")
    if EP == 2:
        for w in range(4): A(f"  ds_read_b128 {v4(E+4*w)}, v62 offset:{FP+2560*w}")
        A(f"  v_readfirstlane_b32 s{sTMP}, v{VPG}")
        A(f"  s_mul_i32 s{sOFF}, s{sW}, 20480")
        for k in range(1, 5): A(f"  s_add_u32 s{73+k}, s{sOFF}, {4096*k}")
        A("  s_mov_b32 exec_hi, 0xff")
        A("  s_waitcnt lgkmcnt(0)")
        OW = RG + 24
        for r in range(4):
            A(f"  v_add_f32 v{E+r}, v{E+r}, v{E+4+r}"); A(f"  v_add_f32 v{E+8+r}, v{E+8+r}, v{E+12+r}")
        for r in range(4): A(f"  v_add_f32 v{E+r}, v{E+r}, v{E+8+r}")
        for r in range(4): A(f"  v_min_u32 v{OW+r}, -2, v{E+r}")
        A(f"  buffer_store_dwordx4 {v4(OW)}, v61, {srd(SWS)}, s{sSL} offen sc1")
        A("  s_mov_b32 exec_hi, -1")
        stamp(5)
        A(f"  s_cmp_lg_u32 s{sTMP}, 31"); A("  s_cbranch_scc1 L_fin")
        C("holder of the last ticket: every wave sums its 160 columns over the 32 heads, re-reading while a slot is still unwritten")
        A(f"  s_mov_b32 s{sIT}, {PLIM}")
        A("L_poll:")
        for k in range(20):
            o = (k % 4)*1024
            A(f"  buffer_load_dwordx4 {v4(E+4*k)}, v61, {srd(SWS)}, s{sOFF if k < 4 else 73 + k//4} offen" + (f" offset:{o}" if o else "") + " sc1")
        TT = E + 80; U = RG
        for k in range(5, 20):
            A(f"  s_waitcnt vmcnt({19-k})")
            for r in range(4): A(f"  v_add_f32 v{TT+4*(k%5)+r}, v{(E if k < 10 else TT)+4*(k%5)+r}, v{E+4*k+r}")
            if k >= 15: A(f"  ds_write_b128 v{VPL}, {v4(TT+4*(k%5))} offset:{RP+1024*(k%5)}")
        for p in range(8): A(f"  ds_read_b128 {v4(U+4*p)}, v{VPL} offset:{RP+640*p}")
        for r in range(10): A(f"  v_add_f32 v{TT+r}, v{TT+r}, v{TT+10+r}")
        for r in range(5): A(f"  v_add_f32 v{TT+r}, v{TT+r}, v{TT+5+r}")
        A(f"  v_add_f32 v{TT}, v{TT}, v{TT+1}"); A(f"  v_add_f32 v{TT+2}, v{TT+2}, v{TT+3}"); A(f"  v_add_f32 v{TT}, v{TT}, v{TT+4}")
        A(f"  v_cmp_u_f32 vcc, v{TT}, v{TT+2}")
        A(f"  v_lshrrev_b32 v6, 1, v62")
        A("  s_waitcnt lgkmcnt(0)")
        A("  s_cbranch_vccnz L_chk")
        A("L_ok:")
        for sft in (4, 2, 1):
            for p in range(sft):
                for r in range(4): A(f"  v_add_f32 v{U+4*p+r}, v{U+4*p+r}, v{U+4*(p+sft)+r}")
        A(f"  v_cvt_pk_bf16_f32 v{U}, v{U}, v{U+1}"); A(f"  v_cvt_pk_bf16_f32 v{U+1}, v{U+2}, v{U+3}")
        A("  s_mov_b32 exec_hi, 0xff")
        A(f"  buffer_store_dwordx2 v[{U}:{U+1}], v6, {srd(SOUT)}, 0 offen")
        A("  s_mov_b32 exec_hi, -1")
        if stamps: A("  s_waitcnt vmcnt(0)")
        R = ["L_chk:"]
        R += [f"  v_max3_u32 v{TT+c}, v{E+20*c}, v{E+20*c+1}, v{E+20*c+2}" for c in range(4)]
        for k in range(3, 19, 2):
            R += [f"  v_max3_u32 v{TT+c}, v{E+20*c+k}, v{E+20*c+k+1}, v{TT+c}" for c in range(4)]
        R += [f"  v_max3_u32 v{TT+c}, v{E+20*c+19}, v{E+20*(c+2)+19}, v{TT+c}" for c in range(2)]
        R += [f"  v_max3_u32 v{TT}, v{TT}, v{TT+1}, v{TT+2}", f"  v_max_u32 v{TT}, v{TT}, v{TT+3}", f"  v_cmp_eq_u32 vcc, -1, v{TT}",
              "  s_nop 4", "  s_cbranch_vccz L_ok", f"  s_sub_u32 s{sIT}, s{sIT}, 1", f"  s_cmp_lg_u32 s{sIT}, 0", "  s_cbranch_scc1 L_poll", "  s_branch L_ok"]
        rare.extend(pad(R))
    A("L_fin:")
    if DIAG:
        k, msk, val = DIAG
        A("  s_waitcnt lgkmcnt(0)")
        A(f"  s_and_b32 s{sTMP}, s2, {msk}"); A(f"  s_cmp_lg_u32 s{sTMP}, {val}"); A("  s_cbranch_scc1 L_end")
        A("L_dg:"); A("  s_sleep 4"); A("  s_memrealtime s[92:93]"); A("  s_waitcnt lgkmcnt(0)")
        A(f"  s_sub_u32 s92, s92, s{80+2*k}"); A("  s_cmp_lt_u32 s92, 15000"); A("  s_cbranch_scc1 L_dg")
    elif stamps:
        stamp(6)
        A("  s_getreg_b32 s94, hwreg(HW_REG_XCC_ID)"); A("  s_and_b32 s94, s94, 7"); A(f"  s_lshl_b32 s{sIT}, s{sIT}, 8"); A(f"  s_or_b32 s94, s94, s{sIT}")
        A("  s_waitcnt lgkmcnt(0)")
        A(f"  s_lshl_b32 s{sTMP}, s2, 2"); A(f"  s_add_u32 s{sTMP}, s{sTMP}, s{sW}"); A(f"  s_lshl_b32 s{sTMP}, s{sTMP}, 5")
        A(f"  s_mov_b32 s{SWS}, s54"); A(f"  s_mov_b32 s{SWS+1}, s55"); A(f"  s_mov_b32 s{SWS+2}, 0x100000"); A(f"  s_mov_b32 s{SWS+3}, 0x20000")
        for k in range(8): A(f"  v_mov_b32 v{4+k}, s{80+2*k}")
        A("  v_mov_b32 v3, 0")
        A("  s_mov_b64 exec, 1"); A(f"  buffer_store_dwordx4 v[4:7], v3, {srd(SWS)}, s{sTMP} offen"); A(f"  buffer_store_dwordx4 v[8:11], v3, {srd(SWS)}, s{sTMP} offen offset:16"); A("  s_waitcnt vmcnt(0)")
    A("L_end:"); A("  s_endpgm")
    if vers:
        tot = nK + nV
        assert tot < 63
        tk = sorted(tot - r for r in TK if 2 <= r <= tot)
        tl = []
        for w in range(4):
            m = sum(1 << t for i, t in enumerate(tk) if i % 4 == w)
            assert not (m & (m << 1))
            tl += [f"  s_cmp_eq_u32 s{sW}, {w}", f"  s_cmov_b32 s40, {hex(m & 0xffffffff)}", f"  s_cmov_b32 s41, {hex(m >> 32)}"]
        i = L.index("@TICKS"); L[i:i+1] = tl
    allp = pad(L)
    T_ = [HDR.rstrip("\n"), f"; @launch grid=(256,1,1) block=(256,1,1) lds={LDS}",
         '.amdgcn_target "amdgcn-amd-amdhsa--gfx950"', ".text", f".globl {NAME}", ".p2align 8", f".type {NAME},@function", f"{NAME}:"]
    T_ += allp + rare
    T_ += ['.section .rodata,"a"', ".p2align 6", f".amdhsa_kernel {NAME}", "  .amdhsa_next_free_vgpr 512", "  .amdhsa_next_free_sgpr 102",
          "  .amdhsa_accum_offset 256", "  .amdhsa_group_segment_fixed_size 0", "  .amdhsa_kernarg_size 64", "  .amdhsa_user_sgpr_count 2",
          "  .amdhsa_user_sgpr_kernarg_segment_ptr 1", "  .amdhsa_system_sgpr_workgroup_id_x 1", ".end_amdhsa_kernel"]
    open(fn, "w").write("\n".join(T_) + "\n")
    sys.stderr.write(f"{fn}: {info} lines={len(T_)}\n")
    return fn
if __name__ == "__main__":
    from build import build
    import genk
    os.makedirs("k", exist_ok=True)
    cfgs = eval(open(sys.argv[1]).read())
    outs = []
    for n, kw in cfgs.items():
        kw = dict(kw); g = [gen, genk.gen][int(kw.pop("old", 0))]
        g(f"k/{n}.s", **kw); build(f"k/{n}.s", quiet=True); outs.append(f"k/{n}.co")
    print(" ".join(outs))
```
